```python
import torch

def _softmax(x, axis=-1):
    return torch.softmax(x, dim=axis)

def _gelu(x):
    return torch.nn.functional.gelu(x, approximate='tanh')

def _silu(x):
    return torch.nn.functional.silu(x)

def _sigmoid(x):
    return torch.sigmoid(x)

def _layernorm(x, axis=-1, eps=1e-05):
    m = x.mean(dim=axis, keepdim=True)
    v = x.var(dim=axis, keepdim=True, unbiased=False)
    return (x - m) / torch.sqrt(v + eps)

def _scatter_add(tgt, idx, src, axis=0):
    return tgt.clone().index_add_(axis, idx, src)

def _segment_sum(src, seg, n):
    out = torch.zeros((n,) + src.shape[1:], dtype=src.dtype)
    return out.index_add_(0, seg, src)

def _pad(x, pw):
    flat = tuple((v for pair in reversed(pw) for v in pair))
    return torch.nn.functional.pad(x, flat)
kernel_name = 'parallel_sum__memory_aug_recurrent_mem_tr__glu_gated_reglu__prompt'

def setup_inputs():

    _w = lambda a: (lambda t: t.to(torch.bfloat16) if t.is_floating_point() else t)(torch.as_tensor(a))

    def _A_setup():
        B, S, Dm = (1, 2048, 640)
        H, Dh = (32, 128)
        M, seg = (8, 32)
        seg = min(seg, S)
        S = S // seg * seg
        return {'x': _w((lambda *s: torch.randn(*s, dtype=torch.bfloat16) * 0.05)(B, S, Dm)), 'mem0': _w((lambda *s: torch.randn(*s, dtype=torch.bfloat16) * 0.2)(B, M, Dm)), 'Wq': _w((lambda *s: torch.randn(*s, dtype=torch.bfloat16) * 1.6)(Dm, H, Dh) * Dm ** (-0.5)), 'Wk': _w((lambda *s: torch.randn(*s, dtype=torch.bfloat16) * 1.6)(Dm, H, Dh) * Dm ** (-0.5)), 'Wv': _w((lambda *s: torch.randn(*s, dtype=torch.bfloat16) * 0.2)(Dm, H, Dh) * Dm ** (-0.5)), 'Wo': _w((lambda *s: torch.randn(*s, dtype=torch.bfloat16) * 0.2)(H, Dh, Dm) * (H * Dh) ** (-0.5)), 'seg_len': seg}
    _A_in = _A_setup()

    def _B_setup():
        B, S, D, F = (1, 2048, 640, 1728)
        return {'x': _w((lambda *s: torch.randn(*s, dtype=torch.bfloat16) * 0.05)(B, S, D)), 'W_gate': _w((lambda *s: torch.randn(*s, dtype=torch.bfloat16) * 0.2)(D, F) * (2.0 / D) ** 0.5), 'W_up': _w((lambda *s: torch.randn(*s, dtype=torch.bfloat16) * 0.2)(D, F) * (2.0 / D) ** 0.5), 'W_down': _w((lambda *s: torch.randn(*s, dtype=torch.bfloat16) * 0.2)(F, D) * (1.0 / F) ** 0.5)}
    _B_in = _B_setup()
    return {'A_x': _A_in['x'], 'A_mem0': _A_in['mem0'], 'A_Wq': _A_in['Wq'], 'A_Wk': _A_in['Wk'], 'A_Wv': _A_in['Wv'], 'A_Wo': _A_in['Wo'], 'A_seg_len': _A_in['seg_len'], 'B_x': _B_in['x'], 'B_W_gate': _B_in['W_gate'], 'B_W_up': _B_in['W_up'], 'B_W_down': _B_in['W_down']}

def reference(A_x, A_mem0, A_Wq, A_Wk, A_Wv, A_Wo, A_seg_len, B_x, B_W_gate, B_W_up, B_W_down):

    def _A_ref(x, mem0, Wq, Wk, Wv, Wo, seg_len):
        B, S, Dm = x.shape
        H, Dh = (Wq.shape[1], Wq.shape[2])
        M = mem0.shape[1]
        scale = Dh ** (-0.5)
        n_seg = S // seg_len
        L = M + seg_len
        idx = torch.arange(L)
        mask = (idx[:, None] < M) | (idx[:, None] >= idx[None, :])
        mem = mem0
        outs = []
        for s in range(n_seg):
            xs = x[:, s * seg_len:(s + 1) * seg_len, :].clone()
            h = torch.concatenate([mem, xs], axis=1)
            q = torch.einsum('btd,dhe->bhte', h, Wq)
            k = torch.einsum('btd,dhe->bhte', h, Wk)
            v = torch.einsum('btd,dhe->bhte', h, Wv)
            scores = torch.einsum('bhqe,bhke->bhqk', q, k) * scale
            scores = torch.where(mask[None, None], scores, -1000000000.0)
            p = _softmax(scores, axis=-1)
            o = torch.einsum('bhqk,bhke->bhqe', p, v)
            o = torch.einsum('bhte,hed->btd', o, Wo)
            mem = o[:, :M, :].clone()
            outs.append(o[:, M:, :])
        return torch.concatenate(outs, axis=1)

    def _B_ref(x, W_gate, W_up, W_down):
        gate = torch.einsum('bsd,df->bsf', x, W_gate)
        up = torch.einsum('bsd,df->bsf', x, W_up)
        gate = gate * (lambda x, dt: x.to(dt))(gate > 0, gate.dtype)
        h = gate * up
        return torch.einsum('bsf,fd->bsd', h, W_down)
    x = A_x
    xn = _layernorm(x, axis=-1)
    return x + _A_ref(xn, A_mem0, A_Wq, A_Wk, A_Wv, A_Wo, A_seg_len) + _B_ref(xn, B_W_gate, B_W_up, B_W_down)
```

```python
import re, subprocess, sys

_REG = re.compile(r"^(-|abs\()?([vas])(?:(\d+)|\[(\d+):(\d+)\])\)?$")
TRANS = ("v_exp_f32", "v_log_f32", "v_rcp_f32", "v_rsq_f32", "v_sqrt_f32", "v_sin_f32", "v_cos_f32")


def regs_of(tok):
    tok = tok.strip()
    if tok == "vcc":
        return {("s", 106), ("s", 107)}
    if tok == "m0":
        return {("m", 0)}
    if tok == "exec":
        return {("e", 0)}
    m = _REG.match(tok)
    if not m:
        return set()
    k = m.group(2)
    if m.group(3) is not None:
        return {(k, int(m.group(3)))}
    return {(k, i) for i in range(int(m.group(4)), int(m.group(5)) + 1)}


class Ins:
    __slots__ = ("text", "mn", "ops", "dst", "src", "kind", "passes", "srcC", "srcAB", "dpp", "data", "states")

    def __init__(self, text):
        self.text = text
        body = text.split(";")[0].strip()
        parts = body.split(None, 1)
        mn = parts[0]
        self.mn = mn
        rest = parts[1] if len(parts) > 1 else ""
        ops = []
        for o in rest.split(","):
            o = o.strip()
            if o:
                ops.append(o.split()[0])
        self.ops = ops
        self.dpp = "_dpp" in mn
        self.passes = 0
        self.srcC = set()
        self.srcAB = set()
        self.data = set()
        self.states = 1
        R = [regs_of(o) for o in ops]
        U = lambda l: set().union(*l) if l else set()
        if mn == "s_nop":
            self.kind = "nop"; self.dst = set(); self.src = set(); self.states = int(ops[0], 0) + 1
        elif mn.startswith("v_mfma") or mn.startswith("v_smfmac"):
            self.kind = "mfma"
            self.passes = 8 if "32x32" in mn else 4
            self.dst = R[0]
            if mn.startswith("v_smfmac"):
                self.srcC = R[0]; self.srcAB = U(R[1:4])
            else:
                self.srcC = R[3]; self.srcAB = U(R[1:3])
            self.src = self.srcC | self.srcAB
        elif mn.startswith("v_permlane"):
            self.kind = "valu"; self.dst = U(R[:2]); self.src = U(R[:2])
        elif mn.startswith("v_"):
            self.kind = "valu"
            nd = 2 if re.match(r"v_(add|sub|subrev|addc|subb)_co", mn) else 1
            self.dst = U(R[:nd]); self.src = U(R[nd:])
            if mn.startswith("v_fmac") or self.dpp:
                self.src = self.src | R[0]
        elif mn.startswith("ds_"):
            self.kind = "mem"
            if mn.startswith("ds_read") or mn.startswith("ds_bpermute") or mn.startswith("ds_swizzle"):
                self.dst = R[0]; self.src = U(R[1:])
            else:
                self.dst = set(); self.src = U(R)
        elif mn.startswith(("global_", "buffer_")):
            self.kind = "mem"
            lds = "_lds_" in mn or re.search(r"\blds\b", rest)
            if lds:
                self.dst = set(); self.src = U(R) | {("m", 0)}
            elif "load" in mn or ("atomic" in mn and re.search(r"\bsc0\b", rest) and mn.startswith("global_")):
                self.dst = R[0]; self.src = U(R[1:])
            else:
                self.dst = set(); self.src = U(R)
                if mn.endswith(("x3", "x4")):
                    self.data = R[1] if mn.startswith("global_") else R[0]
        elif mn.startswith("s_"):
            self.kind = "salu"
            if mn.startswith(("s_cmp", "s_cbranch", "s_branch", "s_waitcnt", "s_barrier", "s_sleep", "s_endpgm", "s_setprio", "s_bitcmp")):
                self.dst = set(); self.src = U(R)
            else:
                self.dst = R[0] if R else set(); self.src = U(R[1:])
        else:
            raise ValueError("unknown instruction " + text)


def need(p, c):
    n = 0
    vec = lambda s: {r for r in s if r[0] in "va"}
    sg = lambda s: {r for r in s if r[0] == "s"}
    if p.kind == "valu":
        pv = vec(p.dst)
        if c.kind == "mfma" and pv & c.src:
            n = max(n, 2)
        if c.kind == "valu":
            if c.mn.startswith("v_permlane") and pv & c.src:
                n = max(n, 2)
            if c.dpp and pv & c.src:
                n = max(n, 2)
            if c.mn.startswith(("v_readlane", "v_readfirstlane")) and pv & c.src:
                n = max(n, 1)
            if p.mn.startswith(TRANS) and not c.mn.startswith(TRANS) and pv & c.src:
                n = max(n, 1)
            if "sdwa" in p.mn and pv & (c.src | c.dst):
                n = max(n, 1)
            if sg(p.dst) & c.src:
                n = max(n, 2)
        if p.mn.startswith(TRANS) and c.kind == "mem" and pv & c.src:
            n = max(n, 1)
        if c.kind == "mem" and sg(p.dst) & c.src:
            n = max(n, 5)
    if p.kind == "mfma":
        P = p.passes
        if c.kind == "mfma":
            if p.dst & c.srcAB:
                n = max(n, P + 4)
            if p.dst & c.srcC and not (p.dst == c.srcC and c.passes == P):
                n = max(n, P + 2)
            if p.dst & c.dst and not (p.dst == c.srcC and c.passes == P):
                n = max(n, P + 2)
        elif c.kind == "valu":
            if p.dst & (c.src | c.dst):
                n = max(n, P + 4)
            if p.srcC & c.dst:
                n = max(n, P - 1)
        elif c.kind == "mem":
            if p.dst & (c.src | c.dst):
                n = max(n, P + 4)
    if p.kind == "mem" and p.data:
        if c.kind == "valu" and p.data & c.dst:
            n = max(n, 2)
        elif p.data & c.dst:
            n = max(n, 1)
    if p.kind == "salu" and ("m", 0) in p.dst and c.kind == "mem" and ("m", 0) in c.src:
        n = max(n, 1)
    return n


class Asm:
    def __init__(self):
        self.lines = []
        self._uid = 0
        self.nops = 0

    def __call__(self, s):
        for l in s.strip("\n").split("\n"):
            l = l.strip()
            if not l or l.startswith(";"):
                continue
            if l.endswith(":"):
                self.label(l[:-1])
                continue
            self.emit(Ins(l))

    def emit(self, c):
        dist = 0
        pad = 0
        for p in reversed(self.lines):
            if not isinstance(p, Ins):
                continue
            if p.mn in ("s_branch", "s_endpgm"):
                break
            n = need(p, c)
            if n > dist:
                pad = max(pad, n - dist)
            dist += p.states
            if dist >= 20:
                break
        while pad > 0:
            k = min(pad, 16)
            self.lines.append(Ins(f"s_nop {k-1}"))
            self.nops += k
            pad -= k
        self.lines.append(c)

    def label(self, l):
        self.lines.append(l + ":")

    def raw(self, s):
        self.lines.append(s)

    def uid(self, p="L"):
        self._uid += 1
        return f"{p}_{self._uid}"

    def text(self):
        return "\n".join(("    " + l.text) if isinstance(l, Ins) else l for l in self.lines) + "\n"

    def ninsn(self):
        return sum(isinstance(l, Ins) for l in self.lines)


def interleave(main, fill, start=0, every=1, per=1):
    out = []
    fi = 0
    for i, m in enumerate(main):
        out.append(m)
        if i >= start and (i - start) % every == 0:
            for _ in range(per):
                if fi < len(fill):
                    out.append(fill[fi]); fi += 1
    out += fill[fi:]
    return out


def kernel_header(name):
    return f""".text
.globl {name}
.p2align 8
.type {name},@function
{name}:
"""


def kernel_desc(name, vgpr, sgpr, accum, nptr=14):
    return f""".section .rodata,"a"
.p2align 6
.amdhsa_kernel {name}
  .amdhsa_next_free_vgpr {vgpr}
  .amdhsa_next_free_sgpr {sgpr}
  .amdhsa_accum_offset {accum}
  .amdhsa_group_segment_fixed_size 0
  .amdhsa_kernarg_size {nptr*8}
  .amdhsa_user_sgpr_count 2
  .amdhsa_user_sgpr_kernarg_segment_ptr 1
  .amdhsa_system_sgpr_workgroup_id_x 1
.end_amdhsa_kernel
"""
```

```python
from asmlib import *
from layout import *
import math, struct

def f32bits(x):
    return struct.unpack("<I", struct.pack("<f", x))[0]

L16, IDX, VWV, VWO, VTW, VTR, VPST, VMST = range(8)
ACCQ, ACCK, ACCV, KX, VX, X, Y = 8, 16, 24, 32, 40, 48, 68
WKV, WVV = 96, 160
L_OWN, L_TQ, L_JUNK, L_REM, L_TK, L_SEL = 0, 5120, 7168, 8192, 13312, 15360
L_SX, L_TO = 0, 8192
L_WV, L_WO = 16384, 81920
GROUPS = [[0, 1], [2, 3], [4, 5, 6], [7, 8, 9]]
S_DBG, S_WS = 12, 14
S_XCC, S_W, S_H, S_SIDE, S_STEP, S_T0, S_T1, S_T2, S_TRY = 18, 19, 20, 21, 22, 23, 24, 25, 26
S_C, S_NEGC = 27, 28
S_KX, S_VX, S_KM, S_VM = 30, 32, 34, 36
S_PART0, S_MLOC0, S_MRW0, S_MRR0 = 38, 40, 42, 44
S_PW, S_PR = 46, 52
S_MLR, S_MRR, S_MLW, S_MRW, S_MLZ, S_MRZ = 54, 56, 58, 60, 62, 64
S_HI4, S_ODDG, S_LO8 = 66, 68, 70
S_SAFE = 29
S_U, S_U12 = 72, 73
S_TAG = 16
S_PUBK, S_PUBV = 4, 6
S_PF = 74
S_ST = 80
MAXTRY = 1 << 20

def vr(b, n=4, k="v"):
    return f"{k}[{b}:{b+n-1}]"

def wq(b, t): return vr((2 * b + t) * 8, 8, "a")
def wk(b, t):
    j = 2 * b + t
    return vr(160 + 8 * j, 8, "a") if j < 12 else vr(WKV + 8 * (j - 12), 8)
def wv(b, t):
    j = 2 * b + t
    assert j >= 8
    return vr(WVV + 8 * (j - 8), 8)

def smf(acc, A, B):
    return f"v_smfmac_f32_16x16x64_bf16 {vr(acc)}, {vr(A)}, {B}, v{IDX}"

class Q:
    def __init__(self, a, name, mx):
        self.a, self.name, self.q, self.mx = a, name, [], mx
    def issue(self, ins, tag=None):
        self.a(ins); self.q.append(tag)
    def wait(self, tag):
        if tag not in self.q: return
        i = len(self.q) - 1 - self.q[::-1].index(tag)
        n = len(self.q) - 1 - i
        self.a(f"s_waitcnt {self.name}({min(n, self.mx)})")
        if n <= self.mx: self.q = self.q[i + 1:]
        else: self.q = self.q[len(self.q) - self.mx:]
    def drain(self):
        self.a(f"s_waitcnt {self.name}(0)"); self.q = []

def add64(a, d, s, off_sgpr=None, imm=None):
    o = f"s{off_sgpr}" if off_sgpr is not None else str(imm)
    a(f"s_add_u32 s{d}, s{s}, {o}\n s_addc_u32 s{d+1}, s{s+1}, 0")


def combine(acc):
    return [f"v_add_f32 v{acc}, v{acc}, v{acc+2}", f"v_add_f32 v{acc+1}, v{acc+1}, v{acc+3}",
            f"v_add_f32 v{acc+4}, v{acc+4}, v{acc+6}", f"v_add_f32 v{acc+5}, v{acc+5}, v{acc+7}",
            f"v_cvt_pk_bf16_f32 v{acc}, v{acc}, v{acc+1}", f"v_cvt_pk_bf16_f32 v{acc+1}, v{acc+4}, v{acc+5}"]

class Lines:
    def __init__(self): self.l = []
    def __call__(self, s):
        if "s_addc" in s:
            self.l.append(s); return
        for x in s.strip("\n").split("\n"):
            x = x.strip()
            if x: self.l.append(x)

TUNE = dict(b1pos=3, b2pos=3, rpos=2, gdelay=10, rdelay=16, rgap=24, gdepth=3, ggap=20, force_slow=0, rt=0, pf=1, pfd=2)
STAMPS = [str(i) for i in range(10)]
SAFE_T = 40.0

def nops(a, n):
    while n > 0:
        k = min(n, 16); a(f"s_nop {k-1}"); n -= k

def chain_loop(a, P, w, fast, prof):
    LST = "" if fast else " sc1"
    N = f"{P}_w{w}{'f' if fast else 's'}"
    ds = Q(a, "lgkmcnt", 15)
    def stamp(name):
        if prof and name in STAMPS:
            i = STAMPS.index(name)
            a(f"{'s_memrealtime' if TUNE['rt'] else 's_memtime'} s[{S_ST+2*i}:{S_ST+2*i+1}]")
    def run(it):
        if isinstance(it, str): a(it)
        elif isinstance(it, list):
            for x in it: run(x)
        else: it()
    def mix(mf, fill, per=2):
        fill = list(fill)
        for m in mf:
            run(m)
            for _ in range(per):
                if fill: run(fill.pop(0))
        return fill
    def dsi(ins, tag=None): return lambda: ds.issue(ins, tag)
    TMP = Y
    def maxl(rs):
        rs = list(rs)
        l = [f"v_max3_u32 v{TMP}, v{rs[0]}, v{rs[1]}, v{rs[2]}"]
        rs = rs[3:]
        while rs:
            if len(rs) >= 2:
                l.append(f"v_max3_u32 v{TMP}, v{TMP}, v{rs[0]}, v{rs[1]}"); rs = rs[2:]
            else:
                l.append(f"v_max_u32 v{TMP}, v{TMP}, v{rs[0]}"); rs = rs[1:]
        return l
    BOUND = f"s_add_u32 s{S_TRY}, s{S_TRY}, 1\n s_cmp_gt_u32 s{S_TRY}, {MAXTRY}\n s_cbranch_scc1 {P}_fail"
    ool = []
    def gather(label, loads, regs, ldsoffs, tag, younger):
        stamp(label.split("_")[-1] + "i")
        a(f"s_waitcnt vmcnt({younger})")
        a.label(label + "_chk")
        stamp(label.split("_")[-1] + "w")
        for i, r in enumerate(regs):
            ds.issue(f"ds_write_b128 v{L16}, {vr(r)} offset:{ldsoffs[i]}", tag)
        for l in maxl([r + i for r in regs for i in range(4)]): a(l)
        a(f"v_cmp_eq_u32 vcc, -1, v{TMP}\n s_cbranch_vccnz {label}")
        def retry():
            a.label(label)
            a("s_mov_b64 exec, vcc")
            for l in loads: a(l)
            a(f"s_mov_b64 exec, -1\n {BOUND}\n s_waitcnt vmcnt(0)\n s_branch {label}_chk")
        ool.append(retry)

    rblk = {0: [0], 1: [1], 2: [2, 4], 3: [3]}[w]
    border = [w] + [b for b in range(4) if b != w] + [4]
    vseq = [(b, t) for b in border if b < 4 for t in range(2)]
    LS = [Y + 4, Y + 12, Y + 20]
    def wv_read(j):
        s = LS[j % 3]
        o = (2 * vseq[j][0] + vseq[j][1]) * 2048
        return [dsi(f"ds_read_b128 {vr(s)}, v{VWV} offset:{o}"),
                dsi(f"ds_read_b128 {vr(s+4)}, v{VWV} offset:{o+1024}", f"wv{j}")]
    kxl = [f"global_load_dwordx4 {vr(KX)}, v{L16}, s[{S_KX}:{S_KX+1}] offset:{w*1024-4096}",
           f"global_load_dwordx4 {vr(KX+4)}, v{L16}, s[{S_KX}:{S_KX+1}] offset:{w*1024}"]
    vxl = [f"global_load_dwordx4 {vr(VX)}, v{L16}, s[{S_VX}:{S_VX+1}] offset:{w*2048-4096}",
           f"global_load_dwordx4 {vr(VX+4)}, v{L16}, s[{S_VX}:{S_VX+1}] offset:{w*2048-3072}"]
    def prep_next():
        for j in range(3): run(wv_read(j))
        for r in range(ACCQ, ACCV + 8, 2): a(f"v_mov_b64 v[{r}:{r+1}], 0")
    ldown = lambda b: f"global_load_dwordx4 {vr(X+4*b)}, v{L16}, s[{S_MLR}:{S_MLR+1}] offset:{b*1024-2048} sc1"
    ldr = [f"global_load_dwordx4 {vr(VX+4*i)}, v{L16}, s[{S_MRR}:{S_MRR+1}] offset:{b*1024-2048} sc1" for i, b in enumerate(rblk)]

    prep_next()
    if prof:
        a(f"""s_lshl_b32 s{S_T0}, s{S_SIDE}, 5
        s_add_u32 s{S_T0}, s{S_T0}, s{S_H}
        s_lshl_b32 s{S_T0}, s{S_T0}, 2
        s_add_u32 s{S_T0}, s{S_T0}, {w}
        s_lshl_b32 s{S_T0}, s{S_T0}, 12
        s_add_u32 s{S_T0}, s{S_T0}, {PROF_OFF}
        v_add_u32 v{TMP}, s{S_T0}, v{L16}""")
        for k in range(4): a(f"global_store_dwordx4 v{TMP}, {vr(ACCQ)}, s[{S_WS}:{S_WS+1}] offset:{k*1024}")
    a(f"s_mov_b32 s{S_TRY}, 0")
    a.label(N + "_loop")
    ds.q = ["wv0", "wv0", "wv1", "wv1", "wv2", "wv2"]
    stamp("0")
    gd = TUNE["gdepth"]
    for d in range(gd - 1):
        a(ldown(w)); nops(a, TUNE["ggap"])
    a.label(N + "_gown")
    a(ldown(w)); a(BOUND)
    a(f"s_waitcnt vmcnt({gd - 1})")
    stamp("gownw")
    for l in maxl(range(X + 4 * w, X + 4 * w + 4)): a(l)
    a(f"v_cmpx_eq_u32 vcc, -1, v{TMP}\n s_cbranch_execnz {N}_gown\n s_mov_b64 exec, -1")
    ds.issue(f"ds_write_b128 v{L16}, {vr(X+4*w)} offset:{L_OWN+w*1024}", "ow")
    if w == 3: a(ldown(4))
    for l in ldr: a(l)
    stamp("1")
    sc = Lines()
    step_bases_w(sc, w)
    fill = []
    j = 0
    for bi, b in enumerate(border):
        ds.wait(f"x{b}")
        qk = [smf(ACCQ, X + 4 * b, wq(b, 0)), smf(ACCQ + 4, X + 4 * b, wq(b, 1)),
              smf(ACCK, X + 4 * b, wk(b, 0)), smf(ACCK + 4, X + 4 * b, wk(b, 1))]
        if bi == 0:
            for l in qk[:TUNE["b1pos"]]: a(l)
            ds.wait("ow")
            a("s_barrier")
            for bb in border[1:4]:
                ds.issue(f"ds_read_b128 {vr(X+4*bb)}, v{L16} offset:{L_OWN+bb*1024}", f"x{bb}")
            for l in qk[TUNE["b1pos"]:]: a(l)
            fill = [kxl[0], sc.l[0], kxl[1]] + sc.l[1:]
        elif bi == 3:
            fill = mix(qk[:TUNE["b2pos"]], fill)
            stamp("2")
            ds.wait("rw")
            a("s_barrier")
            stamp("3")
            if w != 3: ds.issue(f"ds_read_b128 {vr(X+16)}, v{L16} offset:{L_OWN+4096}", "x4")
            fill = mix(qk[TUNE["b2pos"]:], fill)
            fill = [dsi(f"ds_read_b128 {vr(X+4*bb)}, v{L16} offset:{L_REM+bb*1024}", f"r{bb}") for bb in border[:4]] + fill
        else:
            fill = mix(qk, fill, 2 if bi < 4 else 1)
        for t in range(2):
            if b < 4:
                ds.wait(f"wv{j}")
                a(smf(ACCV + 4 * t, X + 4 * b, vr(LS[j % 3], 8)))
                if j + 3 < 8: run(wv_read(j + 3))
                j += 1
            else:
                a(smf(ACCV + 4 * t, X + 4 * b, wv(4, t)))
        if bi == 2:
            ex = [(ldown(4), X + 16, L_OWN + 4096)] if w == 3 else []
            gather(N + "_grem", [e[0] for e in ex] + ldr, [e[1] for e in ex] + [VX + 4 * i for i in range(len(rblk))],
                   [e[2] for e in ex] + [L_REM + bb * 1024 for bb in rblk], "rw", 2)
            fill = [vxl[0], "s_nop 0", vxl[1]] + fill
    ds.issue(f"ds_read_b128 {vr(X+16)}, v{L16} offset:{L_REM+4096}", "r4")
    sc = Lines()
    XV = 0
    if w >= 2 and TUNE["pf"]:
        base = S_KX if w == 2 else S_VX
        XV = TUNE["pf"]
        sc(f"v_lshlrev_b32 v{TMP}, {4 - TUNE['pf']}, v{L16}\n s_mov_b32 m0, {L_JUNK}")
        for hf in range(TUNE["pf"]):
            add64(sc, S_PF, base, imm=TUNE["pfd"] * 262144 - 4096 + 4096 * hf)
            sc(f"global_load_lds_dword v{TMP}, s[{S_PF}:{S_PF+1}]\n s_nop 0")
    if w < 2:
        XV = 2
        sc(f"v_mov_b32 v{TMP}, -1\n s_nop 0")
        for bz, fl_ in ((S_MRZ, " sc1"), (S_MLZ, LST)):
            sc.l.append(f"s_mov_b64 exec, s[{S_LO8}:{S_LO8+1}]\n global_store_dword v{VMST}, v{TMP}, s[{bz}:{bz+1}]{fl_}\n s_mov_b64 exec, -1")
            sc.l.append([])
    sc(f"s_add_u32 s{S_STEP}, s{S_STEP}, 1")
    step_bases_r(sc, w)
    sc(f"s_mov_b64 vcc, s[{S_HI4}:{S_HI4+1}]")
    fill = fill + sc.l
    for b in border:
        ds.wait(f"r{b}")
        fill = mix([smf(ACCQ, X + 4 * b, wq(5 + b, 0)), smf(ACCQ + 4, X + 4 * b, wq(5 + b, 1))], fill)
    run(fill)
    stamp("4")
    FQ, FK = Y + 4, X
    M = []
    for b in range(5): M += [smf(ACCV, X + 4 * b, wv(5 + b, 0)), smf(ACCV + 4, X + 4 * b, wv(5 + b, 1))]
    for b in range(5): M += [smf(ACCK, X + 4 * b, wk(5 + b, 0)), smf(ACCK + 4, X + 4 * b, wk(5 + b, 1))]
    def trd(dst, base, kk, tag):
        return [dsi(f"ds_read_b64_tr_b16 v[{dst+4*kk+2*hf}:{dst+4*kk+2*hf+1}], v{VTR} offset:{base+kk*512+hf*256}", tag) for hf in range(2)]
    def twr(acc, base, tag=None):
        o = (base + w * 512) // 256
        return dsi(f"ds_write2st64_b32 v{VTW}, v{acc}, v{acc+1} offset0:{o} offset1:{o+1}", tag)
    others = [k for k in range(4) if k != w]
    xs, PX, PB, OA, LA, ONE = ACCQ, ACCQ + 4, Y + 24, KX, ACCQ + 4, Y + 20
    SXT = [KX, KX + 4, Y + 24]
    P0, P1, SEL2 = ACCV + 2, ACCV + 4, ACCV + 6
    ms = ACCK + 4
    cq, cv, ck = combine(ACCQ), combine(ACCV), combine(ACCK)
    ones = [f"v_mov_b32 v{ONE+r}, 0x3f803f80" for r in range(4)]
    fqw = trd(FQ, L_TQ, w, "fqw")
    run([M[0], ones[0], "s_nop 1", M[1], ones[1], "s_nop 1",
         M[2], cq[0], cq[1], M[3], cq[2], cq[3], M[4], cq[4], cq[5], M[5], twr(ACCQ, L_TQ), fqw[0], M[6], fqw[1],
         M[7], ones[2], M[8], ones[3], M[9], M[10], "s_nop 1", M[11], "s_nop 2", M[12], cv[0], cv[1]])
    stamp("4a")
    ds.wait("fqw")
    a(f"s_waitcnt vmcnt({2+XV})")
    stamp("4b")
    run([f"v_mfma_f32_16x16x32_bf16 {vr(ACCQ)}, {vr(KX)}, {vr(FQ+4*w)}, 0", cv[2], cv[3],
         f"v_mfma_f32_16x16x32_bf16 {vr(ACCQ+4)}, {vr(KX+4)}, {vr(FQ+4*w)}, 0", cv[4],
         M[13], cv[5], M[14], f"v_mov_b32 v{P0+1}, 0", f"v_mov_b32 v{P1}, 0", M[15]])
    cnd = [f"v_cndmask_b32 v{xs+r}, v{xs+r}, v{xs+4+r}, vcc" for r in range(4)]
    run([cnd[0], cnd[1], M[16], cnd[2], cnd[3], dsi(f"ds_write_b128 v{L16}, {vr(xs)} offset:{L_SX+w*1024}", "sxw"), M[17],
         f"s_mov_b64 exec, s[{S_PUBV}:{S_PUBV+1}]\n global_store_dwordx2 v{L16}, v[{ACCV}:{ACCV+1}], s[{S_VM}:{S_VM+1}] offset:{w*1024}\n s_mov_b64 exec, -1",
         M[18], M[19]])
    XV += 1
    stamp("4c")
    ds.wait("sxw")
    a("s_barrier")
    stamp("5")
    for i, ww in enumerate(others):
        ds.issue(f"ds_read_b128 {vr(SXT[i])}, v{L16} offset:{L_SX+ww*1024}", f"sx{i}")
    run(ck)
    run(twr(ACCK, L_TK, "tk"))
    run(trd(FK, L_TK, w, f"fk{w}"))
    for kk in others: run(trd(FQ, L_TQ, kk, "fq"))
    pk = lambda op, d, x, y: f"v_pk_{op}_f32 v[{d}:{d+1}], v[{x}:{x+1}], v[{y}:{y+1}]"
    ds.wait("sx1")
    run([pk("add", xs, xs, SXT[0]), pk("add", xs + 2, xs + 2, SXT[0] + 2), pk("add", xs, xs, SXT[1]), pk("add", xs + 2, xs + 2, SXT[1] + 2)])
    ds.wait("tk")
    a("s_barrier")
    stamp("6")
    for kk in others: run(trd(FK, L_TK, kk, f"fk{kk}"))
    run([pk("add", xs, xs, SXT[2]), pk("add", xs + 2, xs + 2, SXT[2] + 2)])
    for r in range(4): a(f"v_mul_f32 v{xs+r}, s{S_C}, v{xs+r}")
    def packx():
        return [f"v_cvt_pk_bf16_f32 v{PB+2}, v{PX}, v{PX+1}", f"v_cvt_pk_bf16_f32 v{PB+3}, v{PX+2}, v{PX+3}",
                f"v_cvt_pk_bf16_f32 v{PB}, v{PX}, v{PX+1}", f"v_cvt_pk_bf16_f32 v{PB+1}, v{PX+2}, v{PX+3}",
                f"v_mov_b32_dpp v{PB}, v{PB+2} row_shr:4 row_mask:0xf bank_mask:0xa",
                f"v_mov_b32_dpp v{PB+1}, v{PB+3} row_shr:4 row_mask:0xf bank_mask:0xa",
                f"v_mov_b32_dpp v{PB+2}, v{PB+2} row_shl:4 row_mask:0xf bank_mask:0x5",
                f"v_mov_b32_dpp v{PB+3}, v{PB+3} row_shl:4 row_mask:0xf bank_mask:0x5"]
    pvx = [f"v_mfma_f32_16x16x32_bf16 {vr(LA)}, {vr(ONE)}, {vr(PB)}, 0",
           f"v_mfma_f32_16x16x32_bf16 {vr(OA)}, {vr(VX)}, {vr(PB)}, 0",
           f"v_mfma_f32_16x16x32_bf16 {vr(OA+4)}, {vr(VX+4)}, {vr(PB)}, 0"]
    px = packx()
    for i, kk in enumerate([w] + others):
        ds.wait(f"fk{kk}")
        a(f"v_mfma_f32_16x16x32_bf16 {vr(ms)}, {vr(FK+4*kk)}, {vr(FQ+4*kk)}, {'0' if i == 0 else vr(ms)}")
        a(f"v_exp_f32 v{PX+i}, v{xs+i}")
    stamp("6a")
    a(f"s_mov_b64 exec, s[{S_PUBK}:{S_PUBK+1}]\n global_store_dwordx4 v{L16}, {vr(FK+4*w)}, s[{S_KM}:{S_KM+1}] offset:{w*1024}\n s_mov_b64 exec, -1")
    XV += 1
    a(f"s_cmp_eq_u32 s{S_STEP}, 64\n s_cbranch_scc1 {P}_done")
    grp = GROUPS[w]
    ng = len(grp)
    seq = [(g, w) for g in range(ng)] + [(g, k) for g in range(ng) for k in others]
    WS_ = [X, X + 8, X + 24, X + 32, X + 16, X + 40]
    def wo_read(i):
        g, k = seq[i]
        s = WS_[i % 6]
        off = (g * 4 + k) * 2048
        return [dsi(f"ds_read_b128 {vr(s)}, v{VWO} offset:{off}"), dsi(f"ds_read_b128 {vr(s+4)}, v{VWO} offset:{off+1024}", f"wo{i}")]
    wo = []
    for i in range(6): wo += wo_read(i)
    def W(n=1):
        for _ in range(n):
            if wo: run(wo.pop(0))
    stamp("6b")
    a(f"s_mov_b64 vcc, s[{S_ODDG}:{S_ODDG+1}]")
    run(px[:4])
    run([f"v_cndmask_b32 v{SEL2}, v{ms}, v{ms+2}, vcc", f"v_cndmask_b32 v{SEL2+1}, v{ms+1}, v{ms+3}, vcc"])
    run(px[4:])
    run([f"v_mul_f32 v{SEL2}, s{S_C}, v{SEL2}", f"v_mul_f32 v{SEL2+1}, s{S_C}, v{SEL2+1}", f"s_waitcnt vmcnt({XV})"])
    stamp("6c")
    run([pvx[0], f"v_exp_f32 v{ms}, v{SEL2}", pvx[1], f"v_exp_f32 v{ms+1}, v{SEL2+1}", pvx[2],
         f"v_max3_f32 v{TMP}, abs(v{xs}), abs(v{xs+1}), abs(v{xs+2})",
         f"v_cvt_pk_bf16_f32 v{P0}, v{ms}, v{ms+1}", f"v_cvt_pk_bf16_f32 v{P1+1}, v{ms}, v{ms+1}",
         f"v_max3_f32 v{TMP}, v{TMP}, abs(v{xs+3}), abs(v{SEL2})"])
    pvm = [f"v_mfma_f32_16x16x16_bf16 {vr(LA)}, v[{ONE}:{ONE+1}], v[{P0}:{P0+1}], {vr(LA)}",
           f"v_mfma_f32_16x16x16_bf16 {vr(OA)}, v[{ACCV}:{ACCV+1}], v[{P0}:{P0+1}], {vr(OA)}",
           f"v_mfma_f32_16x16x16_bf16 {vr(OA+4)}, v[{ACCV}:{ACCV+1}], v[{P1}:{P1+1}], {vr(OA+4)}"]
    run([pvm[0], f"v_max_f32 v{TMP}, v{TMP}, abs(v{SEL2+1})", pvm[1], f"v_cmp_nge_f32 vcc, s{S_SAFE}, v{TMP}", pvm[2],
         f"s_cbranch_vccnz {N}_slow"])
    a.label(N + "_pvm")
    BACC = [VX, VX + 4, ACCQ]
    zs = [f"v_mov_b64 v[{r}:{r+1}], 0" for g in range(ng) for r in (BACC[g], BACC[g] + 2)]
    stamp("6d")
    W(3)
    RL = ms + 2
    a(f"v_rcp_f32 v{RL}, v{LA}")
    W(1)
    OF = [None] * 4
    OF[w] = ACCK
    for i, k in enumerate(others): OF[k] = [ACCK + 4, ACCV + 4, ACCQ + 4][i]
    pkm = lambda r: f"v_pk_mul_f32 v[{r}:{r+1}], v[{r}:{r+1}], v[{RL}:{RL+1}] op_sel_hi:[1,0]"
    run([pkm(OA), pkm(OA + 2), f"v_cvt_pk_bf16_f32 v{OF[w]}, v{OA}, v{OA+1}", pkm(OA + 4), f"v_cvt_pk_bf16_f32 v{OF[w]+1}, v{OA+2}, v{OA+3}", pkm(OA + 6),
         f"v_cvt_pk_bf16_f32 v{OF[w]+2}, v{OA+4}, v{OA+5}", f"v_cvt_pk_bf16_f32 v{OF[w]+3}, v{OA+6}, v{OA+7}"])
    ds.issue(f"ds_write_b128 v{L16}, {vr(OF[w])} offset:{L_TO+w*1024}", "tow")
    stamp("7")
    W(4)
    run(zs)
    sb = lambda acc, A, B: smf(acc, A, B) + " abid:1"
    ds.wait("tow")
    stamp("7a")
    a("s_barrier")
    stamp("7b")
    for k in others:
        ds.issue(f"ds_read_b128 {vr(OF[k])}, v{L16} offset:{L_TO+k*1024}", f"of{k}")
    W(4)
    def fin(g):
        c = BACC[g]
        return [f"v_cvt_pk_bf16_f32 v{c}, v{c}, v{c+1}", f"v_cvt_pk_bf16_f32 v{c+1}, v{c+2}, v{c+3}",
                f"v_and_or_b32 v{c}, v{c}, -2, s{S_TAG}",
                f"global_store_dwordx2 v{VPST}, v[{c}:{c+1}], s[{S_PW+2*g}:{S_PW+2*g+1}]{LST}"]
    pend = []
    for i in range(len(seq)):
        g, k = seq[i]
        if k != w: ds.wait(f"of{k}")
        ds.wait(f"wo{i}")
        a(sb(BACC[g], OF[k], vr(WS_[i % 6], 8)))
        if i + 6 < len(seq): run(wo_read(i + 6))
        pos = (i - ng) % 3 if i >= ng else -1
        if pos == 2:
            run(pend[:3] if len(pend) == 4 else pend)
            pend = pend[3:] + [None] + fin(g) if len(pend) == 4 else fin(g)
        elif pos == 0 and pend and len(pend) > 4:
            run(pend[0]); pend = pend[2:]
    run([x for x in pend if x])
    stamp("8")
    add64(a, S_KX, S_KX, imm=262144); add64(a, S_VX, S_VX, imm=262144)
    add64(a, S_KM, S_KM, imm=131072); add64(a, S_VM, S_VM, imm=131072)
    prep_next()
    if w <= 1:
        if w == 1:
            a(f"s_cmp_ge_u32 s{S_H}, 8\n s_cbranch_scc1 {N}_nor")
        ds.issue(f"ds_read_b128 {vr(X+16)}, v{L16} offset:{L_SEL}")
        nops(a, TUNE["rdelay"])
        RS = [X, KX]
        rl = [[f"global_load_dwordx4 {vr(r+4*k)}, v{L16}, s[{S_PR}:{S_PR+1}] offset:{k*1024} sc1" for k in range(4)] for r in RS]
        run(rl[0])
        stamp("rpolli")
        nops(a, TUNE["rgap"])
        run(rl[1])
        ds.drain()
        RA = ACCQ
        a.label(N + "_rchk")
        for si, r in enumerate(RS):
            for k in range(4):
                a(f"s_waitcnt vmcnt({7-k})")
                a(f"v_mfma_f32_16x16x32_bf16 {vr(RA)}, {vr(X+16)}, {vr(r+4*k)}, {'0' if k == 0 else vr(RA)}")
                if k == 0: a(f"v_xor_b32 v{TMP}, s{S_TAG}, v{r}")
                else: a(f"v_bitop3_b32 v{TMP}, v{TMP}, v{r+4*k}, s{S_TAG} bitop3:0xf6")
                a(f"v_bitop3_b32 v{TMP}, v{TMP}, v{r+4*k+2}, s{S_TAG} bitop3:0xf6")
            stamp("rpollw")
            a(f"v_and_b32 v{TMP}, 1, v{TMP}\n v_cmp_ne_u32 vcc, 0, v{TMP}")
            if si == 0:
                a(f"s_cbranch_vccz {N}_rok\n s_mov_b64 exec, vcc")
                run(rl[0])
                a("s_mov_b64 exec, -1")
            else:
                a(f"s_cbranch_vccnz {N}_rpoll")
        def rretry():
            a.label(N + "_rpoll")
            a("s_mov_b64 exec, vcc")
            run(rl[1])
            a(f"s_mov_b64 exec, -1\n {BOUND}\n s_branch {N}_rchk")
        ool.append(rretry)
        a.label(N + "_rok")
        a(f"""v_add_f32_dpp v{RA}, v{RA}, v{RA} row_ror:8 row_mask:0xf bank_mask:0xf
        v_add_f32_dpp v{RA+1}, v{RA+1}, v{RA+1} row_ror:8 row_mask:0xf bank_mask:0xf
        s_mov_b64 exec, s[{S_LO8}:{S_LO8+1}]
        v_cvt_pk_bf16_f32 v{RA}, v{RA}, v{RA+1}
        v_min_u32 v{RA}, -2, v{RA}
        global_store_dword v{VMST}, v{RA}, s[{S_MLW}:{S_MLW+1}]{LST}
        global_store_dword v{VMST}, v{RA}, s[{S_MRW}:{S_MRW+1}] sc1
        s_mov_b64 exec, -1
        v_mov_b64 v[{RA}:{RA+1}], 0
        v_mov_b64 v[{RA+2}:{RA+3}], 0""")
        stamp("9")
        if w == 1:
            a.label(N + "_nor")
    else:
        stamp("9")
    if prof:
        if w < 2: a("s_barrier")
        a(f"s_waitcnt lgkmcnt(0)")
        a(f"""s_lshl_b32 s{S_T0}, s{S_SIDE}, 5
        s_add_u32 s{S_T0}, s{S_T0}, s{S_H}
        s_lshl_b32 s{S_T0}, s{S_T0}, 2
        s_add_u32 s{S_T0}, s{S_T0}, {w}
        s_lshl_b32 s{S_T0}, s{S_T0}, 6
        s_add_u32 s{S_T0}, s{S_T0}, s{S_STEP}
        s_lshl_b32 s{S_T0}, s{S_T0}, 6
        s_add_u32 s{S_T0}, s{S_T0}, {PROF_OFF}
        v_mov_b32 v{TMP}, s{S_T0}""")
        for i in range(len(STAMPS)):
            a(f"v_writelane_b32 v{TMP+1}, s{S_ST+2*i}, {i}")
        a(f"v_writelane_b32 v{TMP+1}, s{S_TRY}, 15")
        a(f"v_lshrrev_b32 v{TMP+2}, 2, v{L16}\n v_add_u32 v{TMP}, v{TMP}, v{TMP+2}\n s_mov_b64 exec, 0xffff")
        a(f"global_store_dword v{TMP}, v{TMP+1}, s[{S_WS}:{S_WS+1}]")
        a("s_mov_b64 exec, -1")
    if not prof or w >= 2: a("s_barrier")
    nops(a, TUNE["gdelay"] if not (prof and w < 2) else max(0, TUNE["gdelay"] - 30))
    a(f"s_branch {N}_loop")
    for f_ in ool: f_()
    a.label(N + "_slow")
    MX, T = TMP, TMP + 1
    a(f"""s_nop 7
    v_max3_f32 v{MX}, v{xs}, v{xs+1}, v{xs+2}
    v_max3_f32 v{MX}, v{MX}, v{xs+3}, v{SEL2}
    v_max_f32 v{MX}, v{MX}, v{SEL2+1}
    v_mov_b32 v{T}, v{MX}
    v_mov_b32_dpp v{T}, v{MX} row_shr:4 row_mask:0xf bank_mask:0xa
    v_mov_b32_dpp v{T}, v{MX} row_shl:4 row_mask:0xf bank_mask:0x5
    v_max_f32 v{MX}, v{MX}, v{T}
    v_mov_b32 v{T}, v{MX}
    v_permlane16_swap_b32 v{MX}, v{T}
    v_max_f32 v{MX}, v{MX}, v{T}
    v_mov_b32 v{T}, v{MX}
    v_permlane32_swap_b32 v{MX}, v{T}
    v_max_f32 v{MX}, v{MX}, v{T}""")
    for (d, s_) in [(PX + r, xs + r) for r in range(4)] + [(ms, SEL2), (ms + 1, SEL2 + 1)]:
        a(f"v_sub_f32 v{d}, v{s_}, v{MX}\n v_exp_f32 v{d}, v{d}")
    run(packx())
    a(f"v_cvt_pk_bf16_f32 v{P0}, v{ms}, v{ms+1}\n v_cvt_pk_bf16_f32 v{P1+1}, v{ms}, v{ms+1}")
    run(pvx); run(pvm)
    a(f"s_nop 7\n s_branch {N}_pvm")

def step_bases_w(a, w):
    s = S_STEP
    a(f"s_and_b32 s{S_TAG}, s{s}, 1")
    if w <= 1:
        for (dl, dr, k) in ((S_MLW, S_MRW, 1), (S_MLZ, S_MRZ, 2)):
            a(f"s_add_u32 s{S_T0}, s{s}, {k}\n s_and_b32 s{S_T0}, s{S_T0}, 3\n s_lshl_b32 s{S_T0}, s{S_T0}, 13")
            add64(a, dl, S_MLOC0, S_T0)
            a(f"s_lshl_b32 s{S_T0}, s{S_T0}, 1")
            add64(a, dr, S_MRW0, S_T0)

def step_bases_r(a, w):
    a(f"s_and_b32 s{S_T0}, s{S_STEP}, 3\n s_lshl_b32 s{S_T0}, s{S_T0}, 13\n s_add_u32 s{S_T1}, s{S_T0}, 2048")
    add64(a, S_MLR, S_MLOC0, S_T1)
    a(f"s_add_u32 s{S_T1}, s{S_T1}, s{S_T0}")
    add64(a, S_MRR, S_MRR0, S_T1)

def chain_init(a, P):
    a(f"""s_load_dwordx2 s[4:5], s[0:1], {A_MEM0}
    s_load_dwordx4 s[8:11], s[0:1], {A_WQ}
    s_load_dwordx4 s[76:79], s[0:1], {A_WV}
    v_and_b32 v8, 63, v0
    v_lshlrev_b32 v{L16}, 4, v8
    v_and_b32 v9, 15, v8
    v_lshrrev_b32 v10, 4, v8
    s_mov_b32 s{S_HI4}, 0xf0f0f0f0
    s_mov_b32 s{S_HI4+1}, 0xf0f0f0f0
    s_mov_b32 s{S_LO8}, 0x00ff00ff
    s_mov_b32 s{S_LO8+1}, 0x00ff00ff
    s_mov_b32 s{S_ODDG}, 0xffff0000
    s_mov_b32 s{S_ODDG+1}, 0xffff0000
    s_mov_b32 s{S_C}, {f32bits(128**-0.5 * math.log2(math.e))}
    s_mov_b32 s{S_SAFE}, {f32bits(-1.0 if TUNE["force_slow"] else SAFE_T)}
    v_bfe_u32 v11, v8, 1, 1
    v_mul_u32_u24 v11, 0xaaaa, v11
    v_bfe_u32 v12, v8, 2, 1
    v_mul_u32_u24 v12, 0xaaaa, v12
    v_lshl_or_b32 v11, v12, 16, v11
    v_or_b32 v{IDX}, 0x44444444, v11
    ; VTW = (l&15)*16 + (l>>4)*4
    v_lshlrev_b32 v11, 4, v9
    v_lshl_add_u32 v{VTW}, v10, 2, v11
    ; VTR = (l>>2)*16 + ((l>>1)&1)*8
    v_lshrrev_b32 v11, 2, v8
    v_lshlrev_b32 v11, 4, v11
    v_bfe_u32 v12, v8, 1, 1
    v_lshl_add_u32 v{VTR}, v12, 3, v11
    ; VPST = (l>>4)*4096 + (l&15)*8 + h*128
    v_lshlrev_b32 v11, 12, v10
    v_lshl_add_u32 v11, v9, 3, v11
    s_lshl_b32 s{S_T0}, s{S_H}, 7
    v_add_u32 v{VPST}, s{S_T0}, v11
    s_lshl_b32 s{S_T0}, s{S_W}, 14
    s_add_u32 s{S_T0}, s{S_T0}, {L_WV}
    v_add_u32 v{VWV}, s{S_T0}, v{L16}
    s_lshl_b32 s{S_U}, s{S_W}, 5
    s_add_u32 s{S_U}, s{S_U}, s{S_H}
    s_lshl_b32 s{S_U12}, s{S_U}, 12
    ; VMST = (u>>2)*512 + (u&1)*256 + ((u>>1)&1)*128 + (4*(g'>>1) + 2*(p&1) + (g'&1))*16 + (p>>1)*4
    s_lshr_b32 s{S_T0}, s{S_U}, 2
    s_lshl_b32 s{S_T0}, s{S_T0}, 9
    s_and_b32 s{S_T1}, s{S_U}, 1
    s_lshl_b32 s{S_T1}, s{S_T1}, 8
    s_add_u32 s{S_T0}, s{S_T0}, s{S_T1}
    s_and_b32 s{S_T1}, s{S_U}, 2
    s_lshl_b32 s{S_T1}, s{S_T1}, 6
    s_add_u32 s{S_T0}, s{S_T0}, s{S_T1}
    v_lshrrev_b32 v11, 5, v8
    v_lshlrev_b32 v11, 2, v11
    v_and_b32 v12, 1, v8
    v_lshl_add_u32 v11, v12, 1, v11
    v_and_b32 v12, 1, v10
    v_add_u32 v11, v11, v12
    v_lshlrev_b32 v11, 4, v11
    v_bfe_u32 v12, v8, 1, 2
    v_lshl_add_u32 v11, v12, 2, v11
    v_add_u32 v{VMST}, s{S_T0}, v11
    """)
    a(f"s_lshl_b32 s{S_T0}, s{S_H}, 13\n s_add_u32 s{S_T1}, s{S_T0}, {KX_OFF+4096}")
    add64(a, S_KX, S_WS, S_T1)
    a(f"s_add_u32 s{S_T1}, s{S_T0}, {VX_OFF+4096}")
    add64(a, S_VX, S_WS, S_T1)
    a(f"s_lshl_b32 s{S_T0}, s{S_H}, 12\n s_add_u32 s{S_T1}, s{S_T0}, {KM_OFF}")
    add64(a, S_KM, S_WS, S_T1)
    a(f"s_lshl_b32 s{S_T0}, s{S_H}, 12\n s_add_u32 s{S_T1}, s{S_T0}, {VM_OFF}")
    add64(a, S_VM, S_WS, S_T1)
    a(f"s_lshl_b32 s{S_T0}, s{S_SIDE}, 19\n s_add_u32 s{S_T1}, s{S_T0}, {PART_OFF}")
    add64(a, S_PART0, S_WS, S_T1)
    a(f"s_lshl_b32 s{S_T0}, s{S_SIDE}, 15\n s_add_u32 s{S_T1}, s{S_T0}, {MLOC_OFF}")
    add64(a, S_MLOC0, S_WS, S_T1)
    a(f"s_lshl_b32 s{S_T0}, s{S_SIDE}, 16\n s_add_u32 s{S_T1}, s{S_T0}, {MREM_OFF}")
    add64(a, S_MRW0, S_WS, S_T1)
    a(f"s_xor_b32 s{S_T0}, s{S_T0}, 0x10000\n s_add_u32 s{S_T1}, s{S_T0}, {MREM_OFF}")
    add64(a, S_MRR0, S_WS, S_T1)
    a("s_waitcnt lgkmcnt(0)")
    a(f"""s_or_b32 s{S_T0}, s{S_SIDE}, s{S_U}
    s_cmp_lg_u32 s{S_T0}, 0
    s_cbranch_scc1 {P}_nocal
    s_mov_b64 exec, 1
    v_mov_b32 v11, {MREM_OFF+0x20000}
    v_mov_b32 v12, {MREM_OFF+0x20000+8192}""")
    for rep in range(2):
        for i, v in enumerate((11, 12)):
            a(f"""s_memtime s[80:81]
            s_waitcnt lgkmcnt(0)
            global_store_dword v{v}, v9, s[{S_WS}:{S_WS+1}] sc1
            s_waitcnt vmcnt(0)
            s_memtime s[82:83]
            s_waitcnt lgkmcnt(0)
            s_sub_u32 s{84+i}, s82, s80""")
    a(f"""s_cmp_lt_u32 s85, s84
    s_cselect_b32 s{S_T0}, 8192, 0
    v_mov_b32 v11, s{S_T0}
    v_mov_b32 v12, 44
    global_store_dword v12, v11, s[{S_DBG}:{S_DBG+1}] sc1
    s_mov_b64 exec, -1""")
    a.label(P + "_nocal")
    a(f"""s_cmp_ge_u32 s{S_U}, 40
    s_cbranch_scc1 {P}_noinit
    s_and_b32 s{S_T0}, s{S_U}, 2
    s_lshl_b32 s{S_T0}, s{S_T0}, 1
    v_add_u32 v11, s{S_T0}, v10
    v_mul_u32_u24 v11, 1280, v11
    v_and_b32 v12, 7, v8
    v_lshl_add_u32 v11, v12, 2, v11
    s_lshr_b32 s{S_T0}, s{S_U}, 2
    s_lshl_b32 s{S_T0}, s{S_T0}, 6
    s_and_b32 s{S_T1}, s{S_U}, 1
    s_lshl_b32 s{S_T1}, s{S_T1}, 5
    s_add_u32 s{S_T0}, s{S_T0}, s{S_T1}
    s_mul_i32 s{S_T1}, s{S_SIDE}, 640
    s_add_u32 s{S_T0}, s{S_T0}, s{S_T1}
    v_add_u32 v11, s{S_T0}, v11
    global_load_dword v13, v11, s[4:5]
    v_mov_b64 v[16:17], -1
    v_mov_b64 v[18:19], -1
    s_lshl_b32 s{S_T0}, s{S_U}, 12
    v_add_u32 v11, s{S_T0}, v{L16}
    v_add_u32 v12, 0x40000, v11""")
    for k in range(4):
        a(f"global_store_dwordx4 v11, v[16:19], s[{S_PART0}:{S_PART0+1}] offset:{k*1024} sc1")
        a(f"global_store_dwordx4 v12, v[16:19], s[{S_PART0}:{S_PART0+1}] offset:{k*1024} sc1")
    for sl in range(1, 4):
        a(f"v_add_u32 v11, {sl*8192}, v{VMST}\n global_store_dword v11, v16, s[{S_MLOC0}:{S_MLOC0+1}] sc1")
    for sl in range(2, 8):
        a(f"v_add_u32 v11, {sl*8192}, v{VMST}\n global_store_dword v11, v16, s[{S_MRW0}:{S_MRW0+1}] sc1")
    a(f"""s_waitcnt vmcnt(0)
    v_min_u32 v13, -2, v13
    v_add_u32 v11, 8192, v{VMST}
    global_store_dword v{VMST}, v13, s[{S_MLOC0}:{S_MLOC0+1}] sc1
    global_store_dword v{VMST}, v13, s[{S_MRW0}:{S_MRW0+1}] sc1
    global_store_dword v11, v13, s[{S_MRW0}:{S_MRW0+1}] sc1""")
    a.label(P + "_noinit")
    a(f"""s_waitcnt vmcnt(0)
    s_barrier
    s_cmp_lg_u32 s{S_W}, 0
    s_cbranch_scc1 {P}_noarr
    s_mov_b64 exec, 1
    v_mov_b32 v11, 40
    v_mov_b32 v12, 1
    global_atomic_add v11, v12, s[{S_DBG}:{S_DBG+1}] sc1
    s_mov_b64 exec, -1""")
    a.label(P + "_noarr")
    a(f"""v_lshlrev_b32 v11, 1, v10
    v_xor_b32 v11, v11, v9
    v_lshlrev_b32 v11, 4, v11
    v_lshl_add_u32 v11, v10, 13, v11
    s_lshl_b32 s{S_T0}, s{S_W}, 17
    s_lshl_b32 s{S_T1}, s{S_H}, 8
    s_add_u32 s{S_T0}, s{S_T0}, s{S_T1}
    v_add_u32 v14, s{S_T0}, v11
    v_add_u32 v15, 0x8000, v14
    v_xor_b32 v16, 128, v14
    v_add_u32 v16, 0x10000, v16
    v_add_u32 v17, 0x8000, v16
    v_lshrrev_b32 v11, 3, v8
    v_mul_u32_u24 v11, 1280, v11
    v_and_b32 v12, 7, v8
    v_lshl_add_u32 v11, v12, 4, v11
    s_mul_i32 s{S_T0}, s{S_H}, 163840
    s_mul_i32 s{S_T1}, s{S_W}, {32*1280}
    s_add_u32 s{S_T0}, s{S_T0}, s{S_T1}
    s_mul_i32 s{S_T1}, s{S_SIDE}, 640
    s_add_u32 s{S_T0}, s{S_T0}, s{S_T1}
    v_add_u32 v18, s{S_T0}, v11
    v_add_u32 v19, {8*1280}, v18
    v_add_u32 v20, {16*1280}, v18
    v_add_u32 v21, {24*1280}, v18
    v_lshrrev_b32 v11, 2, v9
    v_and_b32 v12, 1, v10
    v_lshl_or_b32 v12, v12, 2, v11
    v_lshlrev_b32 v12, 1, v12
    v_bfe_u32 v13, v8, 1, 1
    s_lshl_b32 s{S_T0}, s{S_W}, 2
    v_add_u32 v13, s{S_T0}, v13
    v_xor_b32 v12, v12, v13
    v_lshlrev_b32 v12, 4, v12
    v_lshl_add_u32 v11, v10, 3, v11
    v_lshl_add_u32 v12, v11, 8, v12
    v_and_b32 v11, 1, v8
    v_lshl_add_u32 v22, v11, 3, v12
    v_xor_b32 v23, 32, v22
    v_and_b32 v11, 1, v10
    v_lshlrev_b32 v11, 4, v11
    v_lshrrev_b32 v12, 1, v10
    v_lshl_add_u32 v11, v12, 2, v11
    v_bfe_u32 v12, v8, 2, 1
    v_add_u32 v11, v11, v12
    v_lshlrev_b32 v11, 7, v11
    v_bfe_u32 v12, v8, 3, 1
    v_lshl_add_u32 v11, v12, 5, v11
    v_and_b32 v12, 3, v8
    v_lshl_add_u32 v24, v12, 3, v11
    """)

def chain_weights(a, P, w):
    bases = [8, 10, 76]
    NCH = 35
    D = 9
    def dma(i):
        slot = (i % 10) * 16384 + w * 4096
        if i < 30:
            m, beta = divmod(i, 10)
            a(f"""s_mul_i32 s{S_T0}, s{S_SIDE}, {5 if beta < 5 else -5}
            s_add_u32 s{S_T0}, s{S_T0}, {beta}
            s_lshl_b32 s{S_T0}, s{S_T0}, 19""")
            add64(a, S_PF, bases[m], S_T0)
            regs = [14, 15, 16, 17]
        else:
            add64(a, S_PF, 78, imm=(i - 30) * 128)
            regs = [18, 19, 20, 21]
        for k in range(4):
            a(f"s_mov_b32 m0, {slot + k*1024}\n global_load_lds_dwordx4 v{regs[k]}, s[{S_PF}:{S_PF+1}]")
    for i in range(D): dma(i)
    HOLD = 32
    for i in range(NCH):
        inflight = min(NCH, i + D) - (i + 1)
        a(f"s_waitcnt vmcnt({4*inflight})\n s_barrier")
        if i + D < NCH: dma(i + D)
        slot = (i % 10) * 16384
        if i < 30:
            m, beta = divmod(i, 10)
            a(f"v_add_u32 v25, {slot}, v22\n v_add_u32 v26, {slot}, v23")
            for t in range(2):
                j = 2 * beta + t
                if m == 0: k_, base = "a", 8 * j
                elif m == 1: k_, base = ("a", 160 + 8 * j) if j < 12 else ("v", WKV + 8 * (j - 12))
                else: k_, base = ("v", HOLD + 8 * j) if j < 8 else ("v", WVV + 8 * (j - 8))
                for p, rowoff in enumerate((0, 4, 32, 36)):
                    a(f"ds_read_b64_tr_b16 {k_}[{base+2*p}:{base+2*p+1}], v{25+t} offset:{rowoff*256}")
        else:
            cb = i - 30
            for gi, gam in enumerate(GROUPS[w]):
                if gam >> 1 != cb: continue
                a(f"v_add_u32 v25, {slot + (gam & 1)*64}, v24")
                for k in range(4):
                    for p, eoff in enumerate((0, 2, 8, 10)):
                        a(f"ds_read_b64_tr_b16 v[{8+2*p}:{9+2*p}], v25 offset:{(32*k+eoff)*128}")
                    a("s_waitcnt lgkmcnt(0)")
                    a(f"ds_write_b128 v{VWO}, v[8:11] offset:{(gi*4+k)*2048}")
                    a(f"ds_write_b128 v{VWO}, v[12:15] offset:{(gi*4+k)*2048+1024}")
        a("s_waitcnt lgkmcnt(0)")
    a("s_barrier")
    for j in range(8):
        a(f"ds_write_b128 v{VWV}, {vr(HOLD+8*j)} offset:{j*2048}")
        a(f"ds_write_b128 v{VWV}, {vr(HOLD+8*j+4)} offset:{j*2048+1024}")
    if w == 0:
        a(f"""v_bfe_u32 v8, v{L16}, 4, 4
        v_lshrrev_b32 v9, 3, v8
        v_and_b32 v10, 3, v8
        v_lshl_add_u32 v9, v10, 1, v9
        v_and_b32 v10, 4, v8
        v_lshlrev_b32 v10, 2, v10
        v_mov_b32 v11, 0x3f80
        v_lshlrev_b32 v10, v10, v11""")
        for d in range(4):
            a(f"v_cmp_eq_u32 vcc, {d}, v9\n v_cndmask_b32 v{12+d}, 0, v10, vcc")
        a(f"ds_write_b128 v{L16}, v[12:15] offset:{L_SEL}")
        a(f"s_mov_b32 s{S_TRY}, 0\n v_mov_b32 v8, 40")
        a.label(P + "_cbar")
        a(f"""global_load_dwordx2 v[10:11], v8, s[{S_DBG}:{S_DBG+1}] sc1
        s_add_u32 s{S_TRY}, s{S_TRY}, 1
        s_cmp_gt_u32 s{S_TRY}, {MAXTRY}
        s_cbranch_scc1 {P}_fail
        s_waitcnt vmcnt(0)
        v_readfirstlane_b32 s{S_T0}, v10
        s_cmp_lt_u32 s{S_T0}, 64
        s_cbranch_scc1 {P}_cbar""")
    a("s_waitcnt lgkmcnt(0)\n s_barrier")
    a(f"""v_mov_b32 v8, 44
    global_load_dword v9, v8, s[{S_DBG}:{S_DBG+1}] sc1
    s_waitcnt vmcnt(0)
    v_readfirstlane_b32 s{S_T0}, v9
    s_and_b32 s{S_T0}, s{S_T0}, 8192""")
    add64(a, S_MRW0, S_MRW0, S_T0)
    add64(a, S_MRR0, S_MRR0, S_T0)
    a(f"""s_mov_b32 s{S_STEP}, 0
    s_cmp_eq_u32 s{S_SIDE}, 0
    s_cselect_b32 s{S_PUBV}, -1, 0
    s_cselect_b32 s{S_PUBV+1}, 0, -1
    s_and_b32 s{S_PUBK}, s{S_PUBV}, 0x0f0f0f0f
    s_and_b32 s{S_PUBK+1}, s{S_PUBV+1}, 0x0f0f0f0f""")
    step_bases_r(a, w)
    for g, gam in enumerate(GROUPS[w]):
        add64(a, S_PW + 2 * g, S_PART0, imm=gam * 16384)
    add64(a, S_PR, S_PART0, S_U12)

def chain_body(a, P, prof=False, modes=(True,)):
    if prof: a("s_memrealtime s[100:101]\n s_waitcnt lgkmcnt(0)\n s_mov_b32 s3, s100")
    chain_init(a, P)
    for w in range(1, 4):
        a(f"s_cmp_eq_u32 s{S_W}, {w}\n s_cbranch_scc1 {P}_wave{w}")
    for w in range(4):
        a.label(f"{P}_wave{w}")
        a(f"v_add_u32 v{VWO}, {L_WO + GROUPS[w][0]*8192}, v{L16}")
        chain_weights(a, P, w)
        if prof: a("s_memrealtime s[100:101]\n s_memtime s[10:11]\n s_waitcnt lgkmcnt(0)\n s_mov_b32 s11, s100")
        chain_loop(a, P, w, True, prof)
    a.label(P + "_fail")
    a(f"""v_mov_b32 v8, 48
    v_mov_b32 v9, s{S_STEP}
    v_add_u32 v9, 0x1000, v9
    global_store_dword v8, v9, s[{S_DBG}:{S_DBG+1}] sc1""")
    a.label(P + "_done")
    if prof:
        a(f"""s_memrealtime s[100:101]
        s_memtime s[8:9]
        s_or_b32 s{S_T0}, s{S_SIDE}, s{S_U}
        s_cmp_lg_u32 s{S_T0}, 0
        s_cbranch_scc1 {P}_done2
        s_waitcnt lgkmcnt(0)
        s_sub_u32 s5, s100, s11
        s_sub_u32 s4, s11, s3
        s_sub_u32 s8, s8, s10
        v_mov_b32 v8, s4
        v_mov_b32 v9, s5
        v_mov_b32 v10, s8
        v_mov_b32 v11, 52
        global_store_dwordx3 v11, v[8:10], s[{S_DBG}:{S_DBG+1}]
        {P}_done2:""")
    a("s_waitcnt vmcnt(0)\n s_endpgm")

def chain_kernel(name, prof=False, X0=0, X1=2):
    a = Asm()
    P = "ch"
    a(f"""s_cmp_ge_u32 s2, 256
    s_cbranch_scc1 {P}_exit
    s_load_dwordx4 s[12:15], s[0:1], {A_DBG}
    s_getreg_b32 s{S_XCC}, hwreg(HW_REG_XCC_ID)
    s_and_b32 s{S_XCC}, s{S_XCC}, 7
    v_lshrrev_b32 v1, 6, v0
    v_readfirstlane_b32 s{S_W}, v1
    s_waitcnt lgkmcnt(0)
    s_cmp_lg_u32 s{S_W}, 0
    s_cbranch_scc1 {P}_noat
    s_lshl_b32 s{S_T0}, s{S_XCC}, 2
    v_mov_b32 v2, s{S_T0}
    v_mov_b32 v3, 1
    s_mov_b64 exec, 1
    global_atomic_add v4, v2, v3, s[{S_DBG}:{S_DBG+1}] sc0 sc1
    v_mov_b32 v2, 0
    s_waitcnt vmcnt(0)
    ds_write_b32 v2, v4
    s_waitcnt lgkmcnt(0)
    s_mov_b64 exec, -1
    {P}_noat:
    s_barrier
    v_mov_b32 v2, 0
    ds_read_b32 v4, v2
    s_waitcnt lgkmcnt(0)
    v_readfirstlane_b32 s{S_H}, v4
    s_barrier
    s_cmp_ge_u32 s{S_H}, 32
    s_cbranch_scc1 {P}_exit
    s_mov_b32 s{S_SIDE}, 0
    s_cmp_eq_u32 s{S_XCC}, {X0}
    s_cbranch_scc1 {P}_go
    s_mov_b32 s{S_SIDE}, 1
    s_cmp_eq_u32 s{S_XCC}, {X1}
    s_cbranch_scc1 {P}_go
    {P}_exit:
    s_endpgm
    {P}_go:""")
    chain_body(a, P, prof)
    return a
```

```python
from asmlib import *
from layout import *

def vr(b, n=4, k="v"):
    return f"{k}[{b}:{b+n-1}]"

G_WS = 14
G_W = 19
G_A = 20
G_INC = 22
G_B0, G_B1 = 24, 26
G_O = 28
G_X, G_Y = 30, 32
G_T0, G_T1, G_T2, G_CNT = 34, 35, 36, 37
G_SL, G_SI = 38, 39
G_M0A, G_M0B = 40, 41
V_L16, V_AR, V_BR0, V_BR1, V_AO, V_BA = 0, 1, 2, 3, 4, 8
V_T = 16
V_FA, V_FB = 24, 88
NSLOT = 3

def gemm_setup(a, MT, korder, lda_k, ldb, split, colmode):
    NA = MT // 2 if MT >= 2 else 1
    a(f"""v_and_b32 v{V_T}, 63, v127
    v_lshlrev_b32 v{V_L16}, 4, v{V_T}
    v_and_b32 v{V_T+1}, 15, v{V_T}
    v_lshrrev_b32 v{V_T+2}, 4, v{V_T}""")
    a(f"s_mul_i32 s{G_T0}, s{G_W}, {NA*lda_k*1024}")
    a(f"v_add_u32 v{V_AO}, s{G_T0}, v{V_L16}")
    for i in range(1, NA):
        a(f"v_add_u32 v{V_AO+i}, {i*lda_k*1024}, v{V_AO}")
    a(f"s_mul_i32 s{G_M0A}, s{G_W}, {NA*2048}")
    a(f"s_lshl_b32 s{G_M0B}, s{G_W}, 12\n s_add_u32 s{G_M0B}, s{G_M0B}, {2*MT*2048}")
    a(f"s_lshr_b32 s{G_T0}, s{G_W}, 1\n s_mul_i32 s{G_T0}, s{G_T0}, {MT*2048}\n v_add_u32 v{V_AR}, s{G_T0}, v{V_L16}")
    for i in range(4):
        hi = ((i >> 1) & 1) if korder == "nat" else (i & 1)
        a(f"""v_lshlrev_b32 v{V_T+3}, 1, v{V_T+2}
        v_xor_b32 v{V_T+3}, v{V_T+3}, v{V_T+1}""")
        if hi: a(f"v_xor_b32 v{V_T+3}, 8, v{V_T+3}")
        a(f"""s_lshl_b32 s{G_T0}, s{G_W}, 4
        s_add_u32 s{G_T0}, s{G_T0}, {4*i}
        v_add_u32 v{V_T+4}, s{G_T0}, v{V_T+2}
        v_mul_u32_u24 v{V_T+4}, {ldb}, v{V_T+4}""")
        d = V_BA + 2 * i
        if split:
            a(f"""v_and_b32 v{V_T+5}, 7, v{V_T+3}
            v_lshl_add_u32 v{V_T+4}, v{V_T+5}, 4, v{V_T+4}
            v_cmp_lt_u32 vcc, 7, v{V_T+3}
            v_mov_b32 v{V_T+5}, s{G_B0}
            v_mov_b32 v{V_T+6}, s{G_B1}
            v_cndmask_b32 v{d}, v{V_T+5}, v{V_T+6}, vcc
            v_mov_b32 v{V_T+5}, s{G_B0+1}
            v_mov_b32 v{V_T+6}, s{G_B1+1}
            v_cndmask_b32 v{d+1}, v{V_T+5}, v{V_T+6}, vcc""")
        else:
            a(f"""v_lshl_add_u32 v{V_T+4}, v{V_T+3}, 4, v{V_T+4}
            v_mov_b32 v{d}, s{G_B0}
            v_mov_b32 v{d+1}, s{G_B0+1}""")
        a(f"""v_add_co_u32 v{d}, vcc, v{d}, v{V_T+4}
        v_addc_co_u32 v{d+1}, vcc, 0, v{d+1}, vcc""")
    a(f"s_mov_b32 s{G_INC}, {64*ldb}\n s_mov_b32 s{G_INC+1}, 0")
    g, m = V_T + 2, V_T + 1
    a(f"v_lshrrev_b32 v{V_T+3}, 2, v{m}")
    if korder == "nat":
        a(f"""v_and_b32 v{V_T+4}, 1, v{g}
        v_lshl_or_b32 v{V_T+4}, v{V_T+4}, 2, v{V_T+3}
        v_lshl_add_u32 v{V_T+5}, v{g}, 3, v{V_T+3}""")
    else:
        a(f"""v_lshl_add_u32 v{V_T+5}, v{g}, 2, v{V_T+3}
        v_and_b32 v{V_T+4}, 7, v{V_T+5}""")
    a(f"v_lshlrev_b32 v{V_T+4}, 1, v{V_T+4}")
    a(f"s_and_b32 s{G_T0}, s{G_W}, 1")
    if colmode == "tile":
        a(f"s_lshl_b32 s{G_T0}, s{G_T0}, {2 if split else 3}")
        a(f"v_bfe_u32 v{V_T+6}, v{m}, 1, 1\n v_and_b32 v{V_T+7}, 1, v{m}")
    else:
        a(f"s_lshl_b32 s{G_T0}, s{G_T0}, 3")
        a(f"v_and_b32 v{V_T+6}, 3, v{m}\n v_mov_b32 v{V_T+7}, 0")
    a(f"""v_add_u32 v{V_T+6}, s{G_T0}, v{V_T+6}
    v_xor_b32 v{V_T+6}, v{V_T+6}, v{V_T+4}
    v_lshlrev_b32 v{V_T+6}, 4, v{V_T+6}
    v_lshl_add_u32 v{V_T+6}, v{V_T+5}, 8, v{V_T+6}
    v_lshl_add_u32 v{V_T+6}, v{V_T+7}, 3, v{V_T+6}
    v_add_u32 v{V_T+6}, {2*MT*2048}, v{V_T+6}""")
    if colmode == "tile":
        xm = [0, 32, 128, 160] if split else [0, 32, 64, 96]
    else:
        xm = [0, 8, 64, 72]
    for n in range(4):
        a(f"v_xor_b32 v{120+n}, {xm[n]}, v{V_T+6}" if xm[n] else f"v_mov_b32 v{120+n}, v{V_T+6}")

def gemm_main(a, L, MT, korder, nstage, wfirst):
    NA = MT // 2
    SLOT = 2 * MT * 2048 + 16384
    NDMA = 2 * NA + 4
    rows = [(0, 4), (32, 36)] if korder == "nat" else [(0, 16), (32, 48)]
    def dma():
        l = []
        for i in range(NA):
            l.append(f"s_add_u32 m0, s{G_SI}, s{G_M0A}" if i == 0 else f"s_add_u32 m0, m0, 2048")
            l.append(f"global_load_lds_dwordx4 v{V_AO+i}, s[{G_A}:{G_A+1}] sc1")
            l.append(f"global_load_lds_dwordx4 v{V_AO+i}, s[{G_A}:{G_A+1}] offset:1024 sc1")
        for i in range(4):
            l.append(f"s_add_u32 m0, s{G_SI}, s{G_M0B}" if i == 0 else f"s_add_u32 m0, m0, 1024")
            l.append(f"global_load_lds_dwordx4 v[{V_BA+2*i}:{V_BA+2*i+1}], off")
            l.append(f"v_lshl_add_u64 v[{V_BA+2*i}:{V_BA+2*i+1}], v[{V_BA+2*i}:{V_BA+2*i+1}], 0, s[{G_INC}:{G_INC+1}]")
        l.append(f"s_add_u32 s{G_A}, s{G_A}, 2048\n s_addc_u32 s{G_A+1}, s{G_A+1}, 0")
        l.append(f"s_add_u32 s{G_SI}, s{G_SI}, {SLOT}\n s_cmp_eq_u32 s{G_SI}, {NSLOT*SLOT}\n s_cselect_b32 s{G_SI}, 0, s{G_SI}")
        return l
    def reads(ks, buf):
        l = []
        for n in range(4):
            for h in range(2):
                d = V_FB + 16 * buf + 4 * n + 2 * h
                l.append(f"ds_read_b64_tr_b16 v[{d}:{d+1}], v{V_T+1+n} offset:{rows[ks][h]*256}")
        for i in range(MT):
            l.append(f"ds_read_b128 {vr(V_FA+32*buf+4*i)}, v{V_T} offset:{i*2048+ks*1024}")
        return l
    def addrs():
        return [f"v_add_u32 v{V_T}, s{G_SL}, v{V_AR}"] + [f"v_add_u32 v{V_T+1+n}, s{G_SL}, v{120+n}" for n in range(4)]
    def mfmas(buf):
        l = []
        for i in range(MT):
            for n in range(4):
                c = vr((i * 4 + n) * 4, 4, "a")
                A, B = vr(V_FA + 32 * buf + 4 * i), vr(V_FB + 16 * buf + 4 * n)
                if wfirst: A, B = B, A
                l.append(f"v_mfma_f32_16x16x32_bf16 {c}, {A}, {B}, {c}")
        return l
    adv = f"s_add_u32 s{G_SL}, s{G_SL}, {SLOT}\n s_cmp_eq_u32 s{G_SL}, {NSLOT*SLOT}\n s_cselect_b32 s{G_SL}, 0, s{G_SL}"
    a(f"s_mov_b32 s{G_SI}, 0\n s_mov_b32 s{G_SL}, 0")
    for _ in range(2):
        for l in dma(): a(l)
    for r in range(MT * 16): a(f"v_accvgpr_write_b32 a{r}, 0")
    a(f"s_waitcnt vmcnt({NDMA})\n s_barrier")
    for l in addrs() + reads(0, 0): a(l)
    def stage(issue, last, waitn):
        a("s_waitcnt lgkmcnt(0)")
        f = reads(1, 1) + (dma() if issue else [])
        for l in interleave(mfmas(0), f, 0, 1, 1 if len(f) <= 4 * MT else 2 + (len(f) > 8 * MT)): a(l)
        a("s_waitcnt lgkmcnt(0)")
        m = mfmas(1)
        if last:
            for l in m: a(l)
            return
        a(f"s_waitcnt vmcnt({waitn})\n s_barrier")
        a(adv)
        f = addrs() + reads(0, 0)
        for l in interleave(m, f, 0, 1, 1 if len(f) <= 4 * MT else 2 + (len(f) > 8 * MT)): a(l)
    a(f"s_mov_b32 s{G_CNT}, {nstage-2}")
    a.label(L + "_k")
    stage(True, False, NDMA)
    a(f"s_sub_u32 s{G_CNT}, s{G_CNT}, 1\n s_cmp_lg_u32 s{G_CNT}, 0\n s_cbranch_scc1 {L}_k")
    stage(False, False, 0)
    stage(False, True, 0)
    a("s_nop 7")

def acc_pack(a, dst, t0, t1, tmp):
    for j, t in enumerate((t0, t1)):
        for r in range(4): a(f"v_accvgpr_read_b32 v{tmp+r}, a{t*4+r}")
        a(f"v_cvt_pk_bf16_f32 v{dst+2*j}, v{tmp}, v{tmp+1}\n v_cvt_pk_bf16_f32 v{dst+2*j+1}, v{tmp+2}, v{tmp+3}")

def epi_qk(a, MT, ST=""):
    a(f"""s_lshr_b32 s{G_T0}, s{G_W}, 1
    s_mul_i32 s{G_T0}, s{G_T0}, {MT//2*262144}
    s_and_b32 s{G_T1}, s{G_W}, 1
    s_lshl_b32 s{G_T1}, s{G_T1}, 11
    s_add_u32 s{G_T0}, s{G_T0}, s{G_T1}
    v_add_u32 v{V_T}, s{G_T0}, v{V_L16}""")
    for i in range(MT):
        if i: a(f"v_add_u32 v{V_T}, {4096 if i & 1 else 262144-4096}, v{V_T}")
        for p in range(2):
            d = V_FA + 8 * ((2 * i + p) % 8)
            acc_pack(a, d, i * 4 + 2 * p, i * 4 + 2 * p + 1, d + 4)
            a(f"global_store_dwordx4 v{V_T}, {vr(d)}, s[{G_O}:{G_O+1}] offset:{p*1024}{ST}")

def epi_v(a, MT, ST=""):
    a(f"""s_lshr_b32 s{G_T0}, s{G_W}, 1
    s_mul_i32 s{G_T0}, s{G_T0}, {MT//2*262144}
    s_and_b32 s{G_T1}, s{G_W}, 1
    s_lshl_b32 s{G_T1}, s{G_T1}, 12
    s_add_u32 s{G_T0}, s{G_T0}, s{G_T1}
    v_add_u32 v{V_T}, s{G_T0}, v{V_L16}""")
    for s in range(MT // 2):
        if s: a(f"v_add_u32 v{V_T}, 262144, v{V_T}")
        for n in range(4):
            d = V_FA + 8 * ((4 * s + n) % 8)
            acc_pack(a, d, 2 * s * 4 + n, (2 * s + 1) * 4 + n, d + 4)
            a(f"global_store_dwordx4 v{V_T}, {vr(d)}, s[{G_O}:{G_O+1}] offset:{n*1024}{ST}")

def epi_h(a, MT, ST=""):
    a(f"""s_lshr_b32 s{G_T0}, s{G_W}, 1
    s_mul_i32 s{G_T0}, s{G_T0}, {MT*54*1024}
    s_and_b32 s{G_T1}, s{G_W}, 1
    s_lshl_b32 s{G_T1}, s{G_T1}, 10
    s_add_u32 s{G_T0}, s{G_T0}, s{G_T1}
    v_add_u32 v{V_T}, s{G_T0}, v{V_L16}""")
    for i in range(MT):
        if i: a(f"v_add_u32 v{V_T}, {54*1024}, v{V_T}")
        b = V_FA + 32 * (i % 2)
        acc_pack(a, b, i * 4, i * 4 + 1, b + 8)
        acc_pack(a, b + 4, i * 4 + 2, i * 4 + 3, b + 8)
        for r in range(4):
            a(f"""v_lshlrev_b32 v{b+8}, 16, v{b+r}
            v_and_b32 v{b+9}, 0xffff0000, v{b+r}
            v_lshlrev_b32 v{b+10}, 16, v{b+4+r}
            v_and_b32 v{b+11}, 0xffff0000, v{b+4+r}
            v_cmp_lt_f32 vcc, 0, v{b+8}
            v_cndmask_b32 v{b+12}, 0, 1.0, vcc
            v_cmp_lt_f32 vcc, 0, v{b+9}
            v_cndmask_b32 v{b+13}, 0, 1.0, vcc
            v_mul_f32 v{b+8}, v{b+8}, v{b+12}
            v_mul_f32 v{b+9}, v{b+9}, v{b+13}
            v_mul_f32 v{b+8}, v{b+8}, v{b+10}
            v_mul_f32 v{b+9}, v{b+9}, v{b+11}
            v_cvt_pk_bf16_f32 v{b+16+r}, v{b+8}, v{b+9}""")
        a(f"global_store_dwordx4 v{V_T}, {vr(b+16)}, s[{G_O}:{G_O+1}]{ST}")

def rowmajor_addr(a, MT):
    a(f"""v_bfe_u32 v{V_T}, v{V_L16}, 4, 4
    v_mul_u32_u24 v{V_T}, 1280, v{V_T}
    v_lshrrev_b32 v{V_T+1}, 8, v{V_L16}
    v_lshl_add_u32 v{V_T}, v{V_T+1}, 4, v{V_T}
    s_lshr_b32 s{G_T0}, s{G_W}, 1
    s_mul_i32 s{G_T0}, s{G_T0}, {MT*16*1280}
    s_and_b32 s{G_T1}, s{G_W}, 1
    s_lshl_b32 s{G_T1}, s{G_T1}, 7
    s_add_u32 s{G_T0}, s{G_T0}, s{G_T1}
    v_add_u32 v{V_T}, s{G_T0}, v{V_T}""")

def epi_y(a, MT, ST=""):
    rowmajor_addr(a, MT)
    for i in range(MT):
        if i: a(f"v_add_u32 v{V_T}, {16*1280}, v{V_T}")
        for p in range(2):
            d = V_FA + 8 * ((2 * i + p) % 8)
            acc_pack(a, d, i * 4 + 2 * p, i * 4 + 2 * p + 1, d + 4)
            a(f"global_store_dwordx4 v{V_T}, {vr(d)}, s[{G_O}:{G_O+1}] offset:{p*64}{ST}")

def epi_out(a, MT, LD=""):
    rowmajor_addr(a, MT)
    assert MT <= 4
    a(f"v_mov_b32 v{V_T+1}, v{V_T}")
    for i in range(MT):
        if i: a(f"v_add_u32 v{V_T+1}, {16*1280}, v{V_T+1}")
        for p in range(2):
            b = V_FA + 8 * (2 * i + p)
            a(f"global_load_dwordx4 {vr(b)}, v{V_T+1}, s[{G_X}:{G_X+1}] offset:{p*64}")
            a(f"global_load_dwordx4 {vr(b+4)}, v{V_T+1}, s[{G_Y}:{G_Y+1}] offset:{p*64}{LD}")
    for i in range(MT):
        if i: a(f"v_add_u32 v{V_T}, {16*1280}, v{V_T}")
        for p in range(2):
            k = 2 * i + p
            b = V_FA + 8 * k
            d = V_FB + 16 * (k % 2)
            acc_pack(a, d, i * 4 + 2 * p, i * 4 + 2 * p + 1, d + 4)
            a(f"s_waitcnt vmcnt({2*(2*MT-1-k) + k})")
            for r in range(4):
                a(f"""v_lshlrev_b32 v{d+4}, 16, v{d+r}
                v_and_b32 v{d+5}, 0xffff0000, v{d+r}
                v_lshlrev_b32 v{d+6}, 16, v{b+r}
                v_and_b32 v{d+7}, 0xffff0000, v{b+r}
                v_add_f32 v{d+4}, v{d+4}, v{d+6}
                v_add_f32 v{d+5}, v{d+5}, v{d+7}
                v_cvt_pk_bf16_f32 v{d+8}, v{d+4}, v{d+5}
                v_lshlrev_b32 v{d+6}, 16, v{b+4+r}
                v_and_b32 v{d+7}, 0xffff0000, v{b+4+r}
                v_lshlrev_b32 v{d+4}, 16, v{d+8}
                v_and_b32 v{d+5}, 0xffff0000, v{d+8}
                v_add_f32 v{d+4}, v{d+4}, v{d+6}
                v_add_f32 v{d+5}, v{d+5}, v{d+7}
                v_cvt_pk_bf16_f32 v{d+12+r}, v{d+4}, v{d+5}""")
            a(f"global_store_dwordx4 v{V_T}, {vr(d+12)}, s[{G_O}:{G_O+1}] offset:{p*64}")
```

```python
KX_OFF = 0x0000000
VX_OFF = 0x1000000
QX_OFF = 0x2000000
OX_OFF = 0x3000000
XN_OFF = 0x4000000
HX_OFF = 0x4400000
YB_OFF = 0x4C00000
KM_OFF = 0x5000000
VM_OFF = 0x5800000
PART_OFF = 0x6000000
MLOC_OFF = 0x6100000
MREM_OFF = 0x6200000
PROF_OFF = 0x6400000
A_X, A_MEM0, A_WQ, A_WK, A_WV, A_WO, A_SEG, B_X, B_WG, B_WU, B_WD, A_OUT, A_DBG, A_WS = [8 * i for i in range(14)]
```

```python
from asmlib import *
from layout import *
import math, struct
from gemm import vr, G_WS, G_W, G_T0, G_T1, G_T2

def f32bits(x):
    return struct.unpack("<I", struct.pack("<f", x))[0]

def rbf(a, v, t):
    a(f"v_cvt_pk_bf16_f32 v{v}, v{v}, v{v}\n v_lshlrev_b32 v{v}, 16, v{v}")

def red4(a, v, t, op="add"):
    a(f"""v_mov_b32 v{t}, v{v}
    v_permlane16_swap_b32 v{v}, v{t}
    v_{op}_f32 v{v}, v{v}, v{t}
    v_mov_b32 v{t}, v{v}
    v_permlane32_swap_b32 v{v}, v{t}
    v_{op}_f32 v{v}, v{v}, v{t}""")

def ln_body(a, S_X, S_TILE, ST=""):
    a(f"""v_and_b32 v1, 63, v127
    v_lshlrev_b32 v0, 4, v1
    v_and_b32 v2, 15, v1
    v_lshrrev_b32 v3, 4, v1
    v_mul_u32_u24 v4, 1280, v2
    v_lshl_add_u32 v4, v3, 4, v4
    s_mul_i32 s{G_T0}, s{S_TILE}, {16*1280}
    s_mul_i32 s{G_T1}, s{G_W}, 320
    s_add_u32 s{G_T0}, s{G_T0}, s{G_T1}
    v_add_u32 v4, s{G_T0}, v4""")
    for k in range(5):
        a(f"global_load_dwordx4 {vr(8+4*k)}, v4, s[{S_X}:{S_X+1}] offset:{64*k}")
    a(f"""s_lshl_b32 s{G_T1}, s{G_W}, 2
    v_lshl_add_u32 v5, v2, 4, s{G_T1}
    v_lshlrev_b32 v6, 4, v2
    s_waitcnt vmcnt(0)""")
    F = 32
    for r in range(20):
        a(f"v_lshlrev_b32 v{F+2*r}, 16, v{8+r}\n v_and_b32 v{F+2*r+1}, 0xffff0000, v{8+r}")
    a(f"v_add_f32 v28, v{F}, v{F+1}")
    for r in range(2, 40): a(f"v_add_f32 v28, v28, v{F+r}")
    def wgsum(off):
        red4(a, 28, 29)
        a(f"""ds_write_b32 v5, v28 offset:{off}
        s_waitcnt lgkmcnt(0)
        s_barrier
        ds_read_b128 v[72:75], v6 offset:{off}
        s_waitcnt lgkmcnt(0)
        v_add_f32 v72, v72, v73
        v_add_f32 v74, v74, v75
        v_add_f32 v28, v72, v74
        v_mul_f32 v28, {f32bits(1.0/640)}, v28""")
    wgsum(0)
    a("v_mov_b32 v30, v28\n v_mov_b32 v28, 0")
    for r in range(40):
        a(f"v_sub_f32 v31, v{F+r}, v30\n v_fmac_f32 v28, v31, v31")
    wgsum(256)
    rbf(a, 28, 29)
    a(f"v_add_f32 v28, {f32bits(1e-5)}, v28")
    rbf(a, 28, 29)
    a("v_sqrt_f32 v28, v28")
    rbf(a, 28, 29)
    a("v_rcp_f32 v29, v28")
    rbf(a, 30, 31)
    for r in range(20):
        x0, x1 = F + 2 * r, F + 2 * r + 1
        a(f"""v_sub_f32 v{x0}, v{x0}, v30
        v_sub_f32 v{x1}, v{x1}, v30
        v_cvt_pk_bf16_f32 v31, v{x0}, v{x1}
        v_lshlrev_b32 v{x0}, 16, v31
        v_and_b32 v{x1}, 0xffff0000, v31
        v_mul_f32 v76, v{x0}, v29
        v_mul_f32 v77, v{x1}, v29
        v_fma_f32 v78, -v76, v28, v{x0}
        v_fma_f32 v79, -v77, v28, v{x1}
        v_fmac_f32 v76, v78, v29
        v_fmac_f32 v77, v79, v29
        v_cvt_pk_bf16_f32 v{8+r}, v76, v77""")
    a(f"""s_mul_i32 s{G_T0}, s{S_TILE}, 20480
    s_mul_i32 s{G_T1}, s{G_W}, 5120
    s_add_u32 s{G_T0}, s{G_T0}, s{G_T1}
    s_add_u32 s{G_T0}, s{G_T0}, {XN_OFF+2048}
    v_add_u32 v4, s{G_T0}, v0""")
    for k in range(5):
        a(f"global_store_dwordx4 v4, {vr(8+4*k)}, s[{G_WS}:{G_WS+1}] offset:{1024*k-2048}{ST}")

def attn_body(a, S_SEG, S_HEAD, LD="", ST=""):
    C = f32bits(128 ** -0.5 * math.log2(math.e))
    Q, K, V, KM, VM, S = 8, 40, 72, 104, 120, 128
    a(f"""v_and_b32 v1, 63, v127
    v_lshlrev_b32 v0, 4, v1
    s_lshl_b32 s{G_T0}, s{S_SEG}, 5
    s_add_u32 s{G_T0}, s{G_T0}, s{S_HEAD}
    s_lshl_b32 s{G_T1}, s{G_T0}, 13
    s_add_u32 s{G_T1}, s{G_T1}, 4096
    v_add_u32 v2, s{G_T1}, v0
    v_add_u32 v3, {QX_OFF}, v2
    v_add_u32 v4, {VX_OFF}, v2
    s_lshl_b32 s{G_T1}, s{G_T0}, 12
    v_and_b32 v5, 0x3bf, v0
    v_add_u32 v5, s{G_T1}, v5
    v_add_u32 v5, {KM_OFF}, v5
    s_add_u32 s{G_T1}, s{G_T1}, {VM_OFF}
    v_add_u32 v6, s{G_T1}, v0""")
    ws = f"s[{G_WS}:{G_WS+1}]"
    for f in range(8): a(f"global_load_dwordx4 {vr(Q+4*f)}, v3, {ws} offset:{1024*f-4096}{LD}")
    for f in range(8): a(f"global_load_dwordx4 {vr(K+4*f)}, v2, {ws} offset:{1024*f-4096}{LD}")
    for f in range(4): a(f"global_load_dwordx4 {vr(KM+4*f)}, v5, {ws} offset:{1024*f}{LD}")
    for f in range(8): a(f"global_load_dwordx4 {vr(V+4*f)}, v4, {ws} offset:{1024*f-4096}{LD}")
    for f in range(4): a(f"global_load_dwordx2 a[{2*f}:{2*f+1}], v6, {ws} offset:{1024*f}{LD}")
    a(f"""s_lshl_b32 s{G_T0}, s{S_SEG}, 18
    s_lshl_b32 s{G_T1}, s{S_HEAD}, 12
    s_add_u32 s{G_T0}, s{G_T0}, s{G_T1}
    s_add_u32 s{G_T0}, s{G_T0}, {OX_OFF}
    v_add_u32 v7, s{G_T0}, v0
    v_and_b32 v2, 15, v1
    v_lshrrev_b32 v3, 4, v1
    v_lshlrev_b32 v3, 2, v3
    v_sub_u32 v2, v2, v3
    s_mov_b32 s{G_T2}, {C}
    s_waitcnt vmcnt(12)""")
    SA = 16
    def st(qt, t): return SA + (qt * 3 + t) * 4
    for qt in range(2):
        for t in range(3):
            if t == 1 and qt == 0: continue
            for kk in range(4):
                A = vr(KM + 4 * kk) if t == 2 else vr(K + 16 * t + 4 * kk)
                c = vr(st(qt, t), 4, "a")
                a(f"v_mfma_f32_16x16x32_bf16 {c}, {A}, {vr(Q+16*qt+4*kk)}, {'0' if kk == 0 else c}")
    X = K
    a(f"s_mov_b32 vcc_lo, 0xffff0000\n s_mov_b32 vcc_hi, 0xffff0000\n s_mov_b64 s[42:43], vcc")
    for qt in range(2):
        x = X + 16 * qt
        nt = 1 + qt
        for t in range(nt):
            for r in range(4): a(f"v_accvgpr_read_b32 v{x+4*t+r}, a{st(qt,t)+r}")
        for r in range(4): a(f"v_accvgpr_read_b32 v{x+10+r}, a{st(qt,2)+r}")
        a(f"v_cndmask_b32 v{x+8}, v{x+10}, v{x+12}, s[42:43]\n v_cndmask_b32 v{x+9}, v{x+11}, v{x+13}, s[42:43]")
        vals = [x + i for i in range(4 * nt)] + [x + 8, x + 9]
        for i in range(0, len(vals), 2):
            p, q = vals[i], vals[i + 1]
            a(f"""v_cvt_pk_bf16_f32 v{x+10}, v{p}, v{q}
            v_lshlrev_b32 v{p}, 16, v{x+10}
            v_and_b32 v{q}, 0xffff0000, v{x+10}
            v_mul_f32 v{p}, {f32bits(128**-0.5)}, v{p}
            v_mul_f32 v{q}, {f32bits(128**-0.5)}, v{q}
            v_cvt_pk_bf16_f32 v{x+10}, v{p}, v{q}
            v_lshlrev_b32 v{p}, 16, v{x+10}
            v_and_b32 v{q}, 0xffff0000, v{x+10}""")
        d = x + 4 * qt
        a(f"v_mov_b32 v{x+10}, {f32bits(-999292928.0)}")
        for r in range(4):
            a(f"v_cmp_le_i32 vcc, {r}, v2\n v_cndmask_b32 v{d+r}, v{x+10}, v{d+r}, vcc")
        M, T = x + 10, x + 11
        a(f"v_max3_f32 v{M}, v{x+8}, v{x+9}, v{x}\n v_max3_f32 v{M}, v{M}, v{x+1}, v{x+2}")
        if qt: a(f"v_max3_f32 v{M}, v{M}, v{x+3}, v{x+4}\n v_max3_f32 v{M}, v{M}, v{x+5}, v{x+6}\n v_max_f32 v{M}, v{M}, v{x+7}")
        else: a(f"v_max_f32 v{M}, v{M}, v{x+3}")
        red4(a, M, T, "max")
        for v in vals:
            a(f"v_sub_f32 v{v}, v{v}, v{M}\n v_mul_f32 v{v}, {f32bits(math.log2(math.e))}, v{v}\n v_exp_f32 v{v}, v{v}")
        a(f"v_add_f32 v{M}, v{vals[0]}, v{vals[1]}")
        for v in vals[2:]: a(f"v_add_f32 v{M}, v{M}, v{v}")
        red4(a, M, T)
        a(f"v_rcp_f32 v{M}, v{M}")
        for v in vals: a(f"v_mul_f32 v{v}, v{v}, v{M}")
        a(f"v_cvt_pk_bf16_f32 v{x+12}, v{x}, v{x+1}\n v_cvt_pk_bf16_f32 v{x+13}, v{x+2}, v{x+3}")
        if qt: a(f"v_cvt_pk_bf16_f32 v{x+14}, v{x+4}, v{x+5}\n v_cvt_pk_bf16_f32 v{x+15}, v{x+6}, v{x+7}")
        else: a(f"v_mov_b32 v{x+14}, 0\n v_mov_b32 v{x+15}, 0")
        a(f"v_cvt_pk_bf16_f32 v{x}, v{x+8}, v{x+9}\n v_mov_b32 v{x+1}, 0\n v_mov_b32 v{x+2}, 0\n v_mov_b32 v{x+3}, v{x}")
    a("s_waitcnt vmcnt(0)")
    OA = 48
    for qt in range(2):
        x = X + 16 * qt
        for et in range(8):
            c = vr(OA + (qt * 8 + et) * 4, 4, "a")
            a(f"v_mfma_f32_16x16x32_bf16 {c}, {vr(V+4*et)}, {vr(x+12)}, 0")
        for et in range(8):
            c = vr(OA + (qt * 8 + et) * 4, 4, "a")
            a(f"v_mfma_f32_16x16x16_bf16 {c}, a[{2*(et>>1)}:{2*(et>>1)+1}], v[{x+2*(et&1)}:{x+2*(et&1)+1}], {c}")
    for qt in range(2):
        if qt: a(f"v_add_u32 v7, 131072, v7")
        for kk in range(4):
            d = Q + 8 * kk
            for j in range(2):
                t = OA + (qt * 8 + 2 * kk + j) * 4
                for r in range(4): a(f"v_accvgpr_read_b32 v{d+4+r}, a{t+r}")
                a(f"v_cvt_pk_bf16_f32 v{d+2*j}, v{d+4}, v{d+5}\n v_cvt_pk_bf16_f32 v{d+2*j+1}, v{d+6}, v{d+7}")
            a(f"global_store_dwordx4 v7, {vr(d)}, {ws} offset:{1024*kk}{ST}")
```

```python
import sys, subprocess
sys.path.insert(0, "cdna_kernels")
from asmlib import *
from layout import *
import chain, gemm, misc
from gemm import *

NAME = "parallel_sum__memory_aug_recurrent_mem_tr__glu_gated_reglu__prompt"

def common(a, P, ntask):
    a(f"""s_cmp_ge_u32 s2, {ntask}
    s_cbranch_scc1 {P}_end
    s_load_dwordx2 s[{G_WS}:{G_WS+1}], s[0:1], {A_WS}
    v_mov_b32 v127, v0
    v_lshrrev_b32 v1, 6, v0
    v_readfirstlane_b32 s{G_W}, v1""")

def add64(a, d, s, off):
    a(f"s_add_u32 s{d}, s{s}, {off}\n s_addc_u32 s{d+1}, s{s+1}, 0")

def k_ln():
    a = Asm(); common(a, "ln", 128)
    a(f"s_load_dwordx2 s[4:5], s[0:1], {A_X}\n s_waitcnt lgkmcnt(0)")
    misc.ln_body(a, 4, 2)
    a.label("ln_end"); a("s_endpgm")
    return a

def task_qkv(a, L, S_RB, S_CB, ST=""):
    a(f"""s_lshr_b32 s44, s{S_CB}, 5
    s_and_b32 s45, s{S_CB}, 31
    s_cmp_eq_u32 s44, 0
    s_cselect_b32 s{G_B0}, s6, s8
    s_cselect_b32 s{G_B0+1}, s7, s9
    s_cmp_eq_u32 s44, 2
    s_cselect_b32 s{G_B0}, s4, s{G_B0}
    s_cselect_b32 s{G_B0+1}, s5, s{G_B0+1}
    s_lshl_b32 s{G_T0}, s45, 8""")
    add64(a, G_B0, G_B0, f"s{G_T0}")
    a(f"s_mul_i32 s{G_T0}, s{S_RB}, {16*20480}\n s_add_u32 s{G_T0}, s{G_T0}, {XN_OFF}")
    add64(a, G_A, G_WS, f"s{G_T0}")
    a(f"""s_lshl_b32 s{G_T0}, s{S_RB}, 21
    s_lshl_b32 s{G_T1}, s45, 13
    s_add_u32 s{G_T0}, s{G_T0}, s{G_T1}
    s_lshl_b32 s{G_T1}, s44, 24
    s_add_u32 s{G_T0}, s{G_T0}, s{G_T1}""")
    add64(a, G_O, G_WS, f"s{G_T0}")
    gemm_setup(a, 8, "nat", 20, 8192, False, "tile")
    a(f"s_cmp_eq_u32 s44, 1\n s_cbranch_scc1 {L}_v")
    gemm_main(a, L + "_qk", 8, "nat", 10, True)
    epi_qk(a, 8, ST)
    a(f"s_branch {L}_done")
    a.label(L + "_v")
    gemm_main(a, L + "_v", 8, "nat", 10, False)
    epi_v(a, 8, ST)
    a.label(L + "_done")

def task_f1(a, L, S_RB, S_CB, ST=""):
    a(f"s_lshl_b32 s{G_T0}, s{S_CB}, 7")
    add64(a, G_B0, 4, f"s{G_T0}"); add64(a, G_B1, 6, f"s{G_T0}")
    a(f"s_mul_i32 s{G_T0}, s{S_RB}, {16*20480}\n s_add_u32 s{G_T0}, s{G_T0}, {XN_OFF}")
    add64(a, G_A, G_WS, f"s{G_T0}")
    a(f"""s_mul_i32 s{G_T0}, s{S_RB}, {16*54*1024}
    s_lshl_b32 s{G_T1}, s{S_CB}, 11
    s_add_u32 s{G_T0}, s{G_T0}, s{G_T1}
    s_add_u32 s{G_T0}, s{G_T0}, {HX_OFF}""")
    add64(a, G_O, G_WS, f"s{G_T0}")
    gemm_setup(a, 8, "nat", 20, 3456, True, "tile")
    gemm_main(a, L, 8, "nat", 10, True)
    epi_h(a, 8, ST)

def task_fin(a, L, MT, S_RB, S_CB, final, ST="", LD=""):
    ks = 128 if final else 54
    a(f"s_lshl_b32 s46, s{S_CB}, 8")
    add64(a, G_B0, 4, "s46")
    a(f"s_mul_i32 s{G_T0}, s{S_RB}, {2*MT*ks*1024}\n s_add_u32 s{G_T0}, s{G_T0}, {OX_OFF if final else HX_OFF}")
    add64(a, G_A, G_WS, f"s{G_T0}")
    a(f"s_mul_i32 s{G_T0}, s{S_RB}, {2*MT*16*1280}\n s_add_u32 s{G_T0}, s{G_T0}, s46\n s_add_u32 s{G_T1}, s{G_T0}, {YB_OFF}")
    if final:
        add64(a, G_O, 8, f"s{G_T0}"); add64(a, G_X, 6, f"s{G_T0}"); add64(a, G_Y, G_WS, f"s{G_T1}")
    else:
        add64(a, G_O, G_WS, f"s{G_T1}")
    gemm_setup(a, MT, "perm", ks, 1280, False, "pair")
    gemm_main(a, L, MT, "perm", ks // 2, True)
    if final: epi_out(a, MT, LD)
    else: epi_y(a, MT, ST)

def k_g1():
    a = Asm(); common(a, "g1", 984)
    a(f"""s_and_b32 s42, s2, 7
    s_lshr_b32 s43, s2, 3
    s_cmp_ge_u32 s43, 96
    s_cbranch_scc1 g1_f1
    s_load_dwordx4 s[4:7], s[0:1], {A_WQ}
    s_load_dwordx2 s[8:9], s[0:1], {A_WV}
    s_waitcnt lgkmcnt(0)""")
    task_qkv(a, "g1q", 42, 43)
    a("s_endpgm")
    a.label("g1_f1")
    a(f"s_load_dwordx4 s[4:7], s[0:1], {B_WG}\n s_sub_u32 s43, s43, 96\n s_waitcnt lgkmcnt(0)")
    task_f1(a, "g1f", 42, 43)
    a.label("g1_end"); a("s_endpgm")
    return a

def k_fin(P, final, MT):
    nrb = 64 // MT
    a = Asm(); common(a, P, nrb * 5)
    a(f"""s_load_dwordx2 s[4:5], s[0:1], {A_WO if final else B_WD}
    s_load_dwordx2 s[6:7], s[0:1], {A_X}
    s_load_dwordx2 s[8:9], s[0:1], {A_OUT}
    s_and_b32 s42, s2, {nrb-1}
    s_lshr_b32 s43, s2, {nrb.bit_length()-1}
    s_waitcnt lgkmcnt(0)""")
    task_fin(a, P + "t", MT, 42, 43, final)
    a.label(P + "_end"); a("s_endpgm")
    return a

def k_attn():
    a = Asm(); common(a, "at", 512)
    a(f"""s_lshr_b32 s44, s2, 3
    s_and_b32 s45, s2, 7
    s_lshl_b32 s45, s45, 2
    s_add_u32 s45, s45, s{G_W}
    s_waitcnt lgkmcnt(0)""")
    misc.attn_body(a, 44, 45)
    a.label("at_end"); a("s_endpgm")
    return a

ks = [("ln_kernel", k_ln(), 128, 512, 128, 128),
      ("g1_kernel", k_g1(), 984, 3 * (32768 + 16384), 256, 128),
      ("f2_kernel", k_fin("f2", False, 2), 160, 3 * (8192 + 16384), 256, 128),
      ("chain_kernel", chain.chain_kernel("chain_kernel"), 256, 163840, 512, 256),
      ("attn_kernel", k_attn(), 512, 0, 256, 128),
      ("fin_kernel", k_fin("fo", True, 2), 160, 3 * (8192 + 16384), 256, 128)]
hdr = open(f"cdna_kernels/{NAME}.s.ref").read().split("; Override launch geometry")[0]
s = hdr
for (n, a, g, lds, v, acc) in ks:
    s += f"; @launch kernel={n} grid=({g},1,1) block=(256,1,1) lds={lds}\n"
s += '.amdgcn_target "amdgcn-amd-amdhsa--gfx950"\n'
for (n, a, g, lds, v, acc) in ks:
    print(n, "instr", a.ninsn(), "nops", a.nops)
    s += kernel_header(n) + a.text()
for (n, a, g, lds, v, acc) in ks:
    s += kernel_desc(n, v, 102, acc)
out = sys.argv[1] if len(sys.argv) > 1 else f"cdna_kernels/{NAME}.s"
open(out, "w").write(s)
print("bytes", len(s))
```

```python
from asmlib import *
from layout import *
import math
from gemm import vr, G_WS, G_W, G_T0, G_T1, G_T2
from misc import f32bits, red4

WV0 = 192
def wreg(i):
    return ("a", 4 * i) if i < 64 else ("v", WV0 + 4 * (i - 64))

def ao_weights(a, S_WO, S_HG, S_P):
    a(f"""v_and_b32 v1, 63, v127
    v_and_b32 v2, 15, v1
    v_lshrrev_b32 v3, 4, v1""")
    for i in range(4):
        a(f"""v_lshlrev_b32 v4, 1, v3
        v_xor_b32 v4, v4, v2""")
        if i & 1: a("v_xor_b32 v4, 8, v4")
        a(f"""s_lshl_b32 s{G_T0}, s{G_W}, 4
        s_add_u32 s{G_T0}, s{G_T0}, {4*i}
        v_add_u32 v5, s{G_T0}, v3
        v_mul_u32_u24 v5, 1280, v5
        v_lshl_add_u32 v{8+i}, v4, 4, v5""")
    a(f"""v_lshrrev_b32 v4, 2, v2
    v_lshl_add_u32 v4, v3, 2, v4
    v_and_b32 v5, 7, v4
    v_lshlrev_b32 v5, 1, v5
    v_and_b32 v6, 3, v2
    s_lshl_b32 s{G_T0}, s{G_W}, 2
    v_add_u32 v6, s{G_T0}, v6
    v_xor_b32 v6, v6, v5
    v_lshlrev_b32 v6, 4, v6
    v_lshl_add_u32 v12, v4, 8, v6
    s_mul_i32 s{G_T0}, s{S_HG}, {256*1280}
    s_add_u32 s{S_P}, s{S_WO}, s{G_T0}
    s_addc_u32 s{S_P+1}, s{S_WO+1}, 0
    s_lshl_b32 s{G_T2}, s{G_W}, 12""")
    NS, D, NCH = 9, 8, 20
    def dma(i):
        rc, cb = divmod(i, 5)
        a(f"s_add_u32 s{S_P+2}, s{S_P}, {rc*64*1280 + cb*256}\n s_addc_u32 s{S_P+3}, s{S_P+1}, 0")
        for k in range(4):
            a(f"s_add_u32 m0, s{G_T2}, {(i % NS)*16384 + k*1024}\n global_load_lds_dwordx4 v{8+k}, s[{S_P+2}:{S_P+3}]")
    for i in range(D): dma(i)
    for i in range(NCH):
        infl = min(NCH, i + D) - (i + 1)
        a(f"s_waitcnt vmcnt({4*infl})\n s_barrier")
        if i + D < NCH: dma(i + D)
        rc, cb = divmod(i, 5)
        a(f"v_add_u32 v13, {(i % NS)*16384}, v12")
        for k2 in range(2):
            for par in range(2):
                k_, b = wreg((2 * rc + k2) * 10 + 2 * cb + par)
                for h in range(2):
                    a(f"ds_read_b64_tr_b16 {k_}[{b+2*h}:{b+2*h+1}], v13 offset:{(32*k2+16*h)*256 + par*8}")
        a("s_waitcnt lgkmcnt(0)")
    a("s_barrier")

def ao_segment(a, L, S_SEG, S_HG, wait_chain):
    ws = f"s[{G_WS}:{G_WS+1}]"
    Q, K, V, KM, VM, S = 8, 24, 56, 88, 104, 112
    a(f"""v_and_b32 v1, 63, v127
    v_lshlrev_b32 v0, 4, v1
    s_lshl_b32 s{G_T0}, s{S_SEG}, 5
    s_lshl_b32 s{G_T1}, s{S_HG}, 1
    s_add_u32 s{G_T0}, s{G_T0}, s{G_T1}
    s_lshr_b32 s{G_T1}, s{G_W}, 1
    s_add_u32 s{G_T0}, s{G_T0}, s{G_T1}
    s_lshl_b32 s{G_T1}, s{G_T0}, 13
    s_add_u32 s{G_T1}, s{G_T1}, 4096
    v_add_u32 v2, s{G_T1}, v0
    v_add_u32 v4, {VX_OFF}, v2
    s_and_b32 s{G_T2}, s{G_W}, 1
    s_lshl_b32 s{G_T1}, s{G_T2}, 12
    s_add_u32 s{G_T1}, s{G_T1}, {QX_OFF-4096}
    v_add_u32 v3, s{G_T1}, v2""")
    for f in range(4): a(f"global_load_dwordx4 {vr(Q+4*f)}, v3, {ws} offset:{1024*f} sc1")
    for f in range(8): a(f"global_load_dwordx4 {vr(K+4*f)}, v2, {ws} offset:{1024*f-4096} sc1")
    for f in range(8): a(f"global_load_dwordx4 {vr(V+4*f)}, v4, {ws} offset:{1024*f-4096} sc1")
    a(f"""s_lshl_b32 s{G_T1}, s{G_T0}, 12
    v_and_b32 v5, 0x3bf, v0
    v_add_u32 v5, s{G_T1}, v5
    v_add_u32 v5, {KM_OFF}, v5
    s_add_u32 s{G_T1}, s{G_T1}, {VM_OFF}
    v_add_u32 v6, s{G_T1}, v0
    v_and_b32 v2, 15, v1
    v_lshrrev_b32 v3, 4, v1
    v_lshlrev_b32 v3, 2, v3
    v_sub_u32 v2, v2, v3
    s_lshl_b32 s{G_T2}, s{G_T2}, 4
    v_add_u32 v2, s{G_T2}, v2
    s_waitcnt vmcnt(8)""")
    x = S
    for t in range(2):
        for kk in range(4):
            a(f"v_mfma_f32_16x16x32_bf16 {vr(x+4*t)}, {vr(K+16*t+4*kk)}, {vr(Q+4*kk)}, {'0' if kk == 0 else vr(x+4*t)}")
    T = K
    def rnd(p, q):
        a(f"""v_cvt_pk_bf16_f32 v{T}, v{p}, v{q}
        v_lshlrev_b32 v{p}, 16, v{T}
        v_and_b32 v{q}, 0xffff0000, v{T}
        v_mul_f32 v{p}, {f32bits(128**-0.5)}, v{p}
        v_mul_f32 v{q}, {f32bits(128**-0.5)}, v{q}
        v_cvt_pk_bf16_f32 v{T}, v{p}, v{q}
        v_lshlrev_b32 v{p}, 16, v{T}
        v_and_b32 v{q}, 0xffff0000, v{T}""")
    for i in range(0, 8, 2): rnd(x + i, x + i + 1)
    a(f"v_mov_b32 v{T}, {f32bits(-999292928.0)}")
    for t in range(2):
        for r in range(4):
            a(f"v_cmp_le_i32 vcc, {16*t+r}, v2\n v_cndmask_b32 v{x+4*t+r}, v{T}, v{x+4*t+r}, vcc")
    M = T + 2
    a(f"v_max3_f32 v{M}, v{x}, v{x+1}, v{x+2}\n v_max3_f32 v{M}, v{M}, v{x+3}, v{x+4}\n v_max3_f32 v{M}, v{M}, v{x+5}, v{x+6}\n v_max_f32 v{M}, v{M}, v{x+7}")
    wait_chain()
    for f in range(4): a(f"global_load_dwordx4 {vr(KM+4*f)}, v5, {ws} offset:{1024*f} sc1")
    for f in range(4): a(f"global_load_dwordx2 v[{VM+2*f}:{VM+2*f+1}], v6, {ws} offset:{1024*f} sc1")
    for kk in range(4):
        a(f"s_waitcnt vmcnt({7-kk})")
        a(f"v_mfma_f32_16x16x32_bf16 {vr(x+8)}, {vr(KM+4*kk)}, {vr(Q+4*kk)}, {'0' if kk == 0 else vr(x+8)}")
    a(f"s_mov_b32 vcc_lo, 0xffff0000\n s_mov_b32 vcc_hi, 0xffff0000")
    a(f"v_cndmask_b32 v{x+8}, v{x+8}, v{x+10}, vcc\n v_cndmask_b32 v{x+9}, v{x+9}, v{x+11}, vcc")
    rnd(x + 8, x + 9)
    a(f"v_max3_f32 v{M}, v{M}, v{x+8}, v{x+9}")
    red4(a, M, M + 1, "max")
    vals = [x + i for i in range(10)]
    for v in vals: a(f"v_sub_f32 v{v}, v{v}, v{M}")
    for v in vals: a(f"v_mul_f32 v{v}, {f32bits(math.log2(math.e))}, v{v}")
    for v in vals: a(f"v_exp_f32 v{v}, v{v}")
    a(f"v_add_f32 v{M}, v{vals[0]}, v{vals[1]}\n v_add_f32 v{M+1}, v{vals[2]}, v{vals[3]}")
    for i, v in enumerate(vals[4:]): a(f"v_add_f32 v{M+(i&1)}, v{M+(i&1)}, v{v}")
    a(f"v_add_f32 v{M}, v{M}, v{M+1}")
    red4(a, M, M + 1)
    a(f"v_rcp_f32 v{M}, v{M}")
    for v in vals: a(f"v_mul_f32 v{v}, v{v}, v{M}")
    PB, PM = T + 4, T + 8
    for j in range(4): a(f"v_cvt_pk_bf16_f32 v{PB+j}, v{x+2*j}, v{x+2*j+1}")
    a(f"v_cvt_pk_bf16_f32 v{PM}, v{x+8}, v{x+9}\n v_mov_b32 v{PM+1}, 0\n v_mov_b32 v{PM+2}, 0\n v_cvt_pk_bf16_f32 v{PM+3}, v{x+8}, v{x+9}")
    a("s_waitcnt vmcnt(0)")
    OA = 128
    for et in range(8):
        a(f"v_mfma_f32_16x16x32_bf16 {vr(OA+4*et)}, {vr(V+4*et)}, {vr(PB)}, 0")
    for et in range(8):
        a(f"v_mfma_f32_16x16x16_bf16 {vr(OA+4*et)}, v[{VM+2*(et>>1)}:{VM+2*(et>>1)+1}], v[{PM+2*(et&1)}:{PM+2*(et&1)+1}], {vr(OA+4*et)}")
    a(f"""s_and_b32 s{G_T0}, s{G_W}, 1
    s_lshl_b32 s{G_T0}, s{G_T0}, 13
    s_lshr_b32 s{G_T1}, s{G_W}, 1
    s_lshl_b32 s{G_T1}, s{G_T1}, 12
    s_add_u32 s{G_T0}, s{G_T0}, s{G_T1}
    v_add_u32 v3, s{G_T0}, v0""")
    for kk in range(4):
        for j in range(4): a(f"v_cvt_pk_bf16_f32 v{Q+4*kk+j}, v{OA+8*kk+2*j}, v{OA+8*kk+2*j+1}")
        a(f"ds_write_b128 v3, {vr(Q+4*kk)} offset:{1024*kk}")
    a("s_waitcnt lgkmcnt(0)\n s_barrier")
    OF = 128
    order = [(ks, tt) for ks in range(8) for tt in range(2)]
    for (ks, tt) in order: a(f"ds_read_b128 {vr(OF+4*(tt*8+ks))}, v0 offset:{tt*8192+ks*1024}")
    a(f"""s_lshl_b32 s{G_T0}, s{S_SEG}, 4
    s_add_u32 s{G_T0}, s{G_T0}, s{S_HG}
    s_lshl_b32 s{G_T0}, s{G_T0}, 2
    s_add_u32 s{G_T0}, s{G_T0}, s{G_W}
    s_mul_i32 s{G_T0}, s{G_T0}, 20480
    s_add_u32 s{G_T0}, s{G_T0}, {SLAB_OFF+4096}
    v_add_u32 v4, s{G_T0}, v0""")
    AC = 8
    a("s_waitcnt lgkmcnt(0)")
    pend = []
    for tt in range(2):
        for ct in range(10):
            c = AC + 4 * (tt * 10 + ct)
            for ks in range(8):
                k_, b = wreg(ks * 10 + ct)
                a(f"v_mfma_f32_16x16x32_bf16 {vr(c)}, {vr(b,4,k_)}, {vr(OF+4*(tt*8+ks))}, {'0' if ks == 0 else vr(c)}")
                if ks == 7 and pend:
                    a(pend.pop(0))
            u = tt * 10 + ct
            s = ""
            if u % 8 == 0 and u: s = "v_add_u32 v4, 8192, v4\n"
            pend.append(s + f"global_store_dwordx4 v4, {vr(c)}, {ws} offset:{(u % 8)*1024-4096} sc1")
    for p in pend: a(p)

def red_item(a, S_SEG, S_PART, S_X, S_OUT):
    ws = f"s[{G_WS}:{G_WS+1}]"
    a(f"""v_and_b32 v1, 63, v127
    v_lshlrev_b32 v0, 4, v1
    s_lshl_b32 s{G_T0}, s{S_PART}, 2
    s_add_u32 s{G_T0}, s{G_T0}, s{G_W}
    s_mul_i32 s{G_T1}, s{S_SEG}, {16*81920}
    s_lshl_b32 s{G_T2}, s{G_T0}, 11
    s_add_u32 s{G_T1}, s{G_T1}, s{G_T2}
    s_add_u32 s{G_T1}, s{G_T1}, {SLAB_OFF}
    v_add_u32 v2, s{G_T1}, v0""")
    B = 128
    for hg in range(16):
        if hg: a(f"v_add_u32 v2, 81920, v2")
        for j in range(2): a(f"global_load_dwordx4 {vr(B+8*hg+4*j)}, v2, {ws} offset:{1024*j} sc1")
    a(f"""s_mul_i32 s{G_T1}, s{G_T0}, 205
    s_lshr_b32 s{G_T1}, s{G_T1}, 10
    s_mul_i32 s{G_T2}, s{G_T1}, 5
    s_sub_u32 s{G_T0}, s{G_T0}, s{G_T2}
    s_lshl_b32 s{G_T0}, s{G_T0}, 8
    s_lshr_b32 s{G_T2}, s{G_T1}, 1
    s_lshl_b32 s{G_T2}, s{G_T2}, 6
    s_add_u32 s{G_T0}, s{G_T0}, s{G_T2}
    s_and_b32 s{G_T1}, s{G_T1}, 1
    s_lshl_b32 s{G_T2}, s{S_SEG}, 1
    s_add_u32 s{G_T1}, s{G_T1}, s{G_T2}
    s_mul_i32 s{G_T1}, s{G_T1}, {16*1280}
    s_add_u32 s{G_T0}, s{G_T0}, s{G_T1}
    v_and_b32 v3, 15, v1
    v_mul_u32_u24 v3, 1280, v3
    v_lshrrev_b32 v4, 4, v1
    v_lshl_add_u32 v3, v4, 4, v3
    v_add_u32 v3, s{G_T0}, v3
    v_add_u32 v4, {YB_OFF}, v3
    global_load_dwordx4 v[8:11], v3, s[{S_X}:{S_X+1}]
    global_load_dwordx4 v[12:15], v4, {ws} sc1""")
    for hg in range(1, 16):
        a(f"s_waitcnt vmcnt({2*(15-hg)+2})")
        for r in range(0, 8, 2): a(f"v_pk_add_f32 v[{B+r}:{B+r+1}], v[{B+r}:{B+r+1}], v[{B+8*hg+r}:{B+8*hg+r+1}]")
    a("s_waitcnt vmcnt(0)")
    for r in range(4):
        a(f"""v_cvt_pk_bf16_f32 v16, v{B+2*r}, v{B+2*r+1}
        v_lshlrev_b32 v17, 16, v16
        v_and_b32 v18, 0xffff0000, v16
        v_lshlrev_b32 v19, 16, v{8+r}
        v_and_b32 v20, 0xffff0000, v{8+r}
        v_add_f32 v17, v17, v19
        v_add_f32 v18, v18, v20
        v_cvt_pk_bf16_f32 v16, v17, v18
        v_lshlrev_b32 v19, 16, v{12+r}
        v_and_b32 v20, 0xffff0000, v{12+r}
        v_lshlrev_b32 v17, 16, v16
        v_and_b32 v18, 0xffff0000, v16
        v_add_f32 v17, v17, v19
        v_add_f32 v18, v18, v20
        v_cvt_pk_bf16_f32 v{24+r}, v17, v18""")
    a(f"global_store_dwordx4 v3, v[24:27], s[{S_OUT}:{S_OUT+1}]")
```

```python
from asmlib import *
from layout import *
import math, struct

def f32bits(x):
    return struct.unpack("<I", struct.pack("<f", x))[0]

L16, IDX, VWV, VWO, VTW, VTR, VPST, VMST = range(8)
ACCQ, ACCK, ACCV, KX, VX, X, Y = 8, 16, 24, 32, 40, 48, 68
WKV, WVV = 96, 160
L_OWN, L_TQ, L_JUNK, L_REM, L_TK, L_SEL = 0, 5120, 7168, 8192, 13312, 15360
L_SX, L_TO = 0, 8192
L_WV, L_WO = 16384, 81920
GROUPS = [[0, 1], [2, 3], [4, 5, 6], [7, 8, 9]]
S_DBG, S_WS = 12, 14
S_XCC, S_W, S_H, S_SIDE, S_STEP, S_T0, S_T1, S_T2, S_TRY = 18, 19, 20, 21, 22, 23, 24, 25, 26
S_C, S_NEGC = 27, 28
S_KX, S_VX, S_KM, S_VM = 30, 32, 34, 36
S_PART0, S_MLOC0, S_MRW0, S_MRR0 = 38, 40, 42, 44
S_PW, S_PR = 46, 52
S_MLR, S_MRR, S_MLW, S_MRW, S_MLZ, S_MRZ = 54, 56, 58, 60, 62, 64
S_HI4, S_ODDG, S_LO8 = 66, 68, 70
S_SAFE = 29
S_U, S_U12 = 72, 73
S_TAG = 16
S_PUBK, S_PUBV = 4, 6
S_FL = 8
S_MODE = 17
S_PF = 74
S_ST = 80
MAXTRY = 1 << 20

def vr(b, n=4, k="v"):
    return f"{k}[{b}:{b+n-1}]"

def wq(b, t): return vr((2 * b + t) * 8, 8, "a")
def wk(b, t):
    j = 2 * b + t
    return vr(160 + 8 * j, 8, "a") if j < 12 else vr(WKV + 8 * (j - 12), 8)
def wv(b, t):
    j = 2 * b + t
    assert j >= 8
    return vr(WVV + 8 * (j - 8), 8)

def smf(acc, A, B):
    return f"v_smfmac_f32_16x16x64_bf16 {vr(acc)}, {vr(A)}, {B}, v{IDX}"

class Q:
    def __init__(self, a, name, mx):
        self.a, self.name, self.q, self.mx = a, name, [], mx
    def issue(self, ins, tag=None):
        self.a(ins); self.q.append(tag)
    def wait(self, tag):
        if tag not in self.q: return
        i = len(self.q) - 1 - self.q[::-1].index(tag)
        n = len(self.q) - 1 - i
        self.a(f"s_waitcnt {self.name}({min(n, self.mx)})")
        if n <= self.mx: self.q = self.q[i + 1:]
        else: self.q = self.q[len(self.q) - self.mx:]
    def drain(self):
        self.a(f"s_waitcnt {self.name}(0)"); self.q = []

def add64(a, d, s, off_sgpr=None, imm=None):
    o = f"s{off_sgpr}" if off_sgpr is not None else str(imm)
    a(f"s_add_u32 s{d}, s{s}, {o}\n s_addc_u32 s{d+1}, s{s+1}, 0")


def combine(acc):
    return [f"v_add_f32 v{acc}, v{acc}, v{acc+2}", f"v_add_f32 v{acc+1}, v{acc+1}, v{acc+3}",
            f"v_add_f32 v{acc+4}, v{acc+4}, v{acc+6}", f"v_add_f32 v{acc+5}, v{acc+5}, v{acc+7}",
            f"v_cvt_pk_bf16_f32 v{acc}, v{acc}, v{acc+1}", f"v_cvt_pk_bf16_f32 v{acc+1}, v{acc+4}, v{acc+5}"]

class Lines:
    def __init__(self): self.l = []
    def __call__(self, s):
        if "s_addc" in s:
            self.l.append(s); return
        for x in s.strip("\n").split("\n"):
            x = x.strip()
            if x: self.l.append(x)

TUNE = dict(b1pos=3, b2pos=3, rpos=2, gdelay=10, rdelay=16, rgap=24, gdepth=3, ggap=20, force_slow=0, rt=0, pf=1, pfd=2, lprof=0)
FUSED = [False]
STAMPS = [str(i) for i in range(10)]
SAFE_T = 40.0

def nops(a, n):
    while n > 0:
        k = min(n, 16); a(f"s_nop {k-1}"); n -= k

def chain_loop(a, P, w, fast, prof):
    LST = "" if fast else " sc1"
    N = f"{P}_w{w}{'f' if fast else 's'}"
    ds = Q(a, "lgkmcnt", 15)
    def stamp(name):
        if prof and name in STAMPS:
            i = STAMPS.index(name)
            a(f"{'s_memrealtime' if TUNE['rt'] else 's_memtime'} s[{S_ST+2*i}:{S_ST+2*i+1}]")
    def run(it):
        if isinstance(it, str): a(it)
        elif isinstance(it, list):
            for x in it: run(x)
        else: it()
    def mix(mf, fill, per=2):
        fill = list(fill)
        for m in mf:
            run(m)
            for _ in range(per):
                if fill: run(fill.pop(0))
        return fill
    def dsi(ins, tag=None): return lambda: ds.issue(ins, tag)
    TMP = Y
    def maxl(rs):
        rs = list(rs)
        l = [f"v_max3_u32 v{TMP}, v{rs[0]}, v{rs[1]}, v{rs[2]}"]
        rs = rs[3:]
        while rs:
            if len(rs) >= 2:
                l.append(f"v_max3_u32 v{TMP}, v{TMP}, v{rs[0]}, v{rs[1]}"); rs = rs[2:]
            else:
                l.append(f"v_max_u32 v{TMP}, v{TMP}, v{rs[0]}"); rs = rs[1:]
        return l
    BOUND = f"s_add_u32 s{S_TRY}, s{S_TRY}, 1\n s_cmp_gt_u32 s{S_TRY}, {MAXTRY}\n s_cbranch_scc1 {P}_fail"
    ool = []
    def gather(label, loads, regs, ldsoffs, tag, younger):
        stamp(label.split("_")[-1] + "i")
        a(f"s_waitcnt vmcnt({younger})")
        a.label(label + "_chk")
        stamp(label.split("_")[-1] + "w")
        for i, r in enumerate(regs):
            ds.issue(f"ds_write_b128 v{L16}, {vr(r)} offset:{ldsoffs[i]}", tag)
        for l in maxl([r + i for r in regs for i in range(4)]): a(l)
        a(f"v_cmp_eq_u32 vcc, -1, v{TMP}\n s_cbranch_vccnz {label}")
        def retry():
            a.label(label)
            a("s_mov_b64 exec, vcc")
            for l in loads: a(l)
            a(f"s_mov_b64 exec, -1\n {BOUND}\n s_waitcnt vmcnt(0)\n s_branch {label}_chk")
        ool.append(retry)

    rblk = {0: [0], 1: [1], 2: [2, 4], 3: [3]}[w]
    border = [w] + [b for b in range(4) if b != w] + [4]
    vseq = [(b, t) for b in border if b < 4 for t in range(2)]
    LS = [Y + 4, Y + 12, Y + 20]
    def wv_read(j):
        s = LS[j % 3]
        o = (2 * vseq[j][0] + vseq[j][1]) * 2048
        return [dsi(f"ds_read_b128 {vr(s)}, v{VWV} offset:{o}"),
                dsi(f"ds_read_b128 {vr(s+4)}, v{VWV} offset:{o+1024}", f"wv{j}")]
    kxl = [f"global_load_dwordx4 {vr(KX)}, v{L16}, s[{S_KX}:{S_KX+1}] offset:{w*1024-4096} sc1",
           f"global_load_dwordx4 {vr(KX+4)}, v{L16}, s[{S_KX}:{S_KX+1}] offset:{w*1024} sc1"]
    vxl = [f"global_load_dwordx4 {vr(VX)}, v{L16}, s[{S_VX}:{S_VX+1}] offset:{w*2048-4096} sc1",
           f"global_load_dwordx4 {vr(VX+4)}, v{L16}, s[{S_VX}:{S_VX+1}] offset:{w*2048-3072} sc1"]
    def prep_next():
        for j in range(3): run(wv_read(j))
        for r in range(ACCQ, ACCV + 8, 2): a(f"v_mov_b64 v[{r}:{r+1}], 0")
    ldown = lambda b: f"global_load_dwordx4 {vr(X+4*b)}, v{L16}, s[{S_MLR}:{S_MLR+1}] offset:{b*1024-2048} sc1"
    ldr = [f"global_load_dwordx4 {vr(VX+4*i)}, v{L16}, s[{S_MRR}:{S_MRR+1}] offset:{b*1024-2048} sc1" for i, b in enumerate(rblk)]

    prep_next()
    if prof:
        a(f"""s_lshl_b32 s{S_T0}, s{S_SIDE}, 5
        s_add_u32 s{S_T0}, s{S_T0}, s{S_H}
        s_lshl_b32 s{S_T0}, s{S_T0}, 2
        s_add_u32 s{S_T0}, s{S_T0}, {w}
        s_lshl_b32 s{S_T0}, s{S_T0}, 12
        s_add_u32 s{S_T0}, s{S_T0}, {PROF_OFF}
        v_add_u32 v{TMP}, s{S_T0}, v{L16}""")
        for k in range(4): a(f"global_store_dwordx4 v{TMP}, {vr(ACCQ)}, s[{S_WS}:{S_WS+1}] offset:{k*1024}")
    a(f"s_mov_b32 s{S_TRY}, 0")
    a.label(N + "_loop")
    ds.q = ["wv0", "wv0", "wv1", "wv1", "wv2", "wv2"]
    stamp("0")
    gd = TUNE["gdepth"]
    for d in range(gd - 1):
        a(ldown(w)); nops(a, TUNE["ggap"])
    a.label(N + "_gown")
    a(ldown(w)); a(BOUND)
    a(f"s_waitcnt vmcnt({gd - 1})")
    stamp("gownw")
    for l in maxl(range(X + 4 * w, X + 4 * w + 4)): a(l)
    a(f"v_cmpx_eq_u32 vcc, -1, v{TMP}\n s_cbranch_execnz {N}_gown\n s_mov_b64 exec, -1")
    ds.issue(f"ds_write_b128 v{L16}, {vr(X+4*w)} offset:{L_OWN+w*1024}", "ow")
    if w == 3: a(ldown(4))
    for l in ldr: a(l)
    stamp("1")
    sc = Lines()
    step_bases_w(sc, w)
    fill = []
    j = 0
    for bi, b in enumerate(border):
        ds.wait(f"x{b}")
        qk = [smf(ACCQ, X + 4 * b, wq(b, 0)), smf(ACCQ + 4, X + 4 * b, wq(b, 1)),
              smf(ACCK, X + 4 * b, wk(b, 0)), smf(ACCK + 4, X + 4 * b, wk(b, 1))]
        if bi == 0:
            for l in qk[:TUNE["b1pos"]]: a(l)
            ds.wait("ow")
            a("s_barrier")
            for bb in border[1:4]:
                ds.issue(f"ds_read_b128 {vr(X+4*bb)}, v{L16} offset:{L_OWN+bb*1024}", f"x{bb}")
            for l in qk[TUNE["b1pos"]:]: a(l)
            fill = [kxl[0], sc.l[0], kxl[1]] + sc.l[1:]
        elif bi == 3:
            fill = mix(qk[:TUNE["b2pos"]], fill)
            stamp("2")
            ds.wait("rw")
            a("s_barrier")
            stamp("3")
            if w != 3: ds.issue(f"ds_read_b128 {vr(X+16)}, v{L16} offset:{L_OWN+4096}", "x4")
            fill = mix(qk[TUNE["b2pos"]:], fill)
            fill = [dsi(f"ds_read_b128 {vr(X+4*bb)}, v{L16} offset:{L_REM+bb*1024}", f"r{bb}") for bb in border[:4]] + fill
        else:
            fill = mix(qk, fill, 2 if bi < 4 else 1)
        for t in range(2):
            if b < 4:
                ds.wait(f"wv{j}")
                a(smf(ACCV + 4 * t, X + 4 * b, vr(LS[j % 3], 8)))
                if j + 3 < 8: run(wv_read(j + 3))
                j += 1
            else:
                a(smf(ACCV + 4 * t, X + 4 * b, wv(4, t)))
        if bi == 2:
            ex = [(ldown(4), X + 16, L_OWN + 4096)] if w == 3 else []
            gather(N + "_grem", [e[0] for e in ex] + ldr, [e[1] for e in ex] + [VX + 4 * i for i in range(len(rblk))],
                   [e[2] for e in ex] + [L_REM + bb * 1024 for bb in rblk], "rw", 2)
            fill = [vxl[0], "s_nop 0", vxl[1]] + fill
    ds.issue(f"ds_read_b128 {vr(X+16)}, v{L16} offset:{L_REM+4096}", "r4")
    sc = Lines()
    XV = 0
    if w >= 2 and TUNE["pf"]:
        base = S_KX if w == 2 else S_VX
        XV = TUNE["pf"]
        sc(f"v_lshlrev_b32 v{TMP}, {4 - TUNE['pf']}, v{L16}\n s_mov_b32 m0, {L_JUNK}")
        for hf in range(TUNE["pf"]):
            add64(sc, S_PF, base, imm=TUNE["pfd"] * 262144 - 4096 + 4096 * hf)
            sc(f"global_load_lds_dword v{TMP}, s[{S_PF}:{S_PF+1}] sc1\n s_nop 0")
    if w == 2 and FUSED[0]:
        XV += 1
        sc(f"v_mov_b32 v{TMP+1}, s{S_STEP}")
        sc.l.append(f"s_mov_b64 exec, 1\n global_store_dword v{L16}, v{TMP+1}, s[{S_FL}:{S_FL+1}] sc1\n s_mov_b64 exec, -1")
    if w < 2:
        XV = 2
        sc(f"v_mov_b32 v{TMP}, -1\n s_nop 0")
        for bz, fl_ in ((S_MRZ, " sc1"), (S_MLZ, LST)):
            sc.l.append(f"s_mov_b64 exec, s[{S_LO8}:{S_LO8+1}]\n global_store_dword v{VMST}, v{TMP}, s[{bz}:{bz+1}]{fl_}\n s_mov_b64 exec, -1")
            sc.l.append([])
    sc(f"s_add_u32 s{S_STEP}, s{S_STEP}, 1")
    step_bases_r(sc, w)
    sc(f"s_mov_b64 vcc, s[{S_HI4}:{S_HI4+1}]")
    fill = fill + sc.l
    for b in border:
        ds.wait(f"r{b}")
        fill = mix([smf(ACCQ, X + 4 * b, wq(5 + b, 0)), smf(ACCQ + 4, X + 4 * b, wq(5 + b, 1))], fill)
    run(fill)
    stamp("4")
    FQ, FK = Y + 4, X
    M = []
    for b in range(5): M += [smf(ACCV, X + 4 * b, wv(5 + b, 0)), smf(ACCV + 4, X + 4 * b, wv(5 + b, 1))]
    for b in range(5): M += [smf(ACCK, X + 4 * b, wk(5 + b, 0)), smf(ACCK + 4, X + 4 * b, wk(5 + b, 1))]
    def trd(dst, base, kk, tag):
        return [dsi(f"ds_read_b64_tr_b16 v[{dst+4*kk+2*hf}:{dst+4*kk+2*hf+1}], v{VTR} offset:{base+kk*512+hf*256}", tag) for hf in range(2)]
    def twr(acc, base, tag=None):
        o = (base + w * 512) // 256
        return dsi(f"ds_write2st64_b32 v{VTW}, v{acc}, v{acc+1} offset0:{o} offset1:{o+1}", tag)
    others = [k for k in range(4) if k != w]
    xs, PX, PB, OA, LA, ONE = ACCQ, ACCQ + 4, Y + 24, KX, ACCQ + 4, Y + 20
    SXT = [KX, KX + 4, Y + 24]
    P0, P1, SEL2 = ACCV + 2, ACCV + 4, ACCV + 6
    ms = ACCK + 4
    cq, cv, ck = combine(ACCQ), combine(ACCV), combine(ACCK)
    ones = [f"v_mov_b32 v{ONE+r}, 0x3f803f80" for r in range(4)]
    fqw = trd(FQ, L_TQ, w, "fqw")
    run([M[0], ones[0], "s_nop 1", M[1], ones[1], "s_nop 1",
         M[2], cq[0], cq[1], M[3], cq[2], cq[3], M[4], cq[4], cq[5], M[5], twr(ACCQ, L_TQ), fqw[0], M[6], fqw[1],
         M[7], ones[2], M[8], ones[3], M[9], M[10], "s_nop 1", M[11], "s_nop 2", M[12], cv[0], cv[1]])
    stamp("4a")
    ds.wait("fqw")
    a(f"s_waitcnt vmcnt({2+XV})")
    stamp("4b")
    run([f"v_mfma_f32_16x16x32_bf16 {vr(ACCQ)}, {vr(KX)}, {vr(FQ+4*w)}, 0", cv[2], cv[3],
         f"v_mfma_f32_16x16x32_bf16 {vr(ACCQ+4)}, {vr(KX+4)}, {vr(FQ+4*w)}, 0", cv[4],
         M[13], cv[5], M[14], f"v_mov_b32 v{P0+1}, 0", f"v_mov_b32 v{P1}, 0", M[15]])
    cnd = [f"v_cndmask_b32 v{xs+r}, v{xs+r}, v{xs+4+r}, vcc" for r in range(4)]
    run([cnd[0], cnd[1], M[16], cnd[2], cnd[3], dsi(f"ds_write_b128 v{L16}, {vr(xs)} offset:{L_SX+w*1024}", "sxw"), M[17],
         f"s_mov_b64 exec, s[{S_PUBV}:{S_PUBV+1}]\n global_store_dwordx2 v{L16}, v[{ACCV}:{ACCV+1}], s[{S_VM}:{S_VM+1}] offset:{w*1024} sc1\n s_mov_b64 exec, -1",
         M[18], M[19]])
    XV += 1
    stamp("4c")
    ds.wait("sxw")
    a("s_barrier")
    stamp("5")
    for i, ww in enumerate(others):
        ds.issue(f"ds_read_b128 {vr(SXT[i])}, v{L16} offset:{L_SX+ww*1024}", f"sx{i}")
    run(ck)
    run(twr(ACCK, L_TK, "tk"))
    run(trd(FK, L_TK, w, f"fk{w}"))
    for kk in others: run(trd(FQ, L_TQ, kk, "fq"))
    pk = lambda op, d, x, y: f"v_pk_{op}_f32 v[{d}:{d+1}], v[{x}:{x+1}], v[{y}:{y+1}]"
    ds.wait("sx1")
    run([pk("add", xs, xs, SXT[0]), pk("add", xs + 2, xs + 2, SXT[0] + 2), pk("add", xs, xs, SXT[1]), pk("add", xs + 2, xs + 2, SXT[1] + 2)])
    ds.wait("tk")
    a("s_barrier")
    stamp("6")
    for kk in others: run(trd(FK, L_TK, kk, f"fk{kk}"))
    run([pk("add", xs, xs, SXT[2]), pk("add", xs + 2, xs + 2, SXT[2] + 2)])
    for r in range(4): a(f"v_mul_f32 v{xs+r}, s{S_C}, v{xs+r}")
    def packx():
        return [f"v_cvt_pk_bf16_f32 v{PB+2}, v{PX}, v{PX+1}", f"v_cvt_pk_bf16_f32 v{PB+3}, v{PX+2}, v{PX+3}",
                f"v_cvt_pk_bf16_f32 v{PB}, v{PX}, v{PX+1}", f"v_cvt_pk_bf16_f32 v{PB+1}, v{PX+2}, v{PX+3}",
                f"v_mov_b32_dpp v{PB}, v{PB+2} row_shr:4 row_mask:0xf bank_mask:0xa",
                f"v_mov_b32_dpp v{PB+1}, v{PB+3} row_shr:4 row_mask:0xf bank_mask:0xa",
                f"v_mov_b32_dpp v{PB+2}, v{PB+2} row_shl:4 row_mask:0xf bank_mask:0x5",
                f"v_mov_b32_dpp v{PB+3}, v{PB+3} row_shl:4 row_mask:0xf bank_mask:0x5"]
    pvx = [f"v_mfma_f32_16x16x32_bf16 {vr(LA)}, {vr(ONE)}, {vr(PB)}, 0",
           f"v_mfma_f32_16x16x32_bf16 {vr(OA)}, {vr(VX)}, {vr(PB)}, 0",
           f"v_mfma_f32_16x16x32_bf16 {vr(OA+4)}, {vr(VX+4)}, {vr(PB)}, 0"]
    px = packx()
    for i, kk in enumerate([w] + others):
        ds.wait(f"fk{kk}")
        a(f"v_mfma_f32_16x16x32_bf16 {vr(ms)}, {vr(FK+4*kk)}, {vr(FQ+4*kk)}, {'0' if i == 0 else vr(ms)}")
        a(f"v_exp_f32 v{PX+i}, v{xs+i}")
    stamp("6a")
    a(f"s_mov_b64 exec, s[{S_PUBK}:{S_PUBK+1}]\n global_store_dwordx4 v{L16}, {vr(FK+4*w)}, s[{S_KM}:{S_KM+1}] offset:{w*1024} sc1\n s_mov_b64 exec, -1")
    XV += 1
    a(f"s_cmp_eq_u32 s{S_STEP}, 64\n s_cbranch_scc1 {P}_done")
    grp = GROUPS[w]
    ng = len(grp)
    seq = [(g, w) for g in range(ng)] + [(g, k) for g in range(ng) for k in others]
    WS_ = [X, X + 8, X + 24, X + 32, X + 16, X + 40]
    def wo_read(i):
        g, k = seq[i]
        s = WS_[i % 6]
        off = (g * 4 + k) * 2048
        return [dsi(f"ds_read_b128 {vr(s)}, v{VWO} offset:{off}"), dsi(f"ds_read_b128 {vr(s+4)}, v{VWO} offset:{off+1024}", f"wo{i}")]
    wo = []
    for i in range(6): wo += wo_read(i)
    def W(n=1):
        for _ in range(n):
            if wo: run(wo.pop(0))
    stamp("6b")
    a(f"s_mov_b64 vcc, s[{S_ODDG}:{S_ODDG+1}]")
    run(px[:4])
    run([f"v_cndmask_b32 v{SEL2}, v{ms}, v{ms+2}, vcc", f"v_cndmask_b32 v{SEL2+1}, v{ms+1}, v{ms+3}, vcc"])
    run(px[4:])
    run([f"v_mul_f32 v{SEL2}, s{S_C}, v{SEL2}", f"v_mul_f32 v{SEL2+1}, s{S_C}, v{SEL2+1}", f"s_waitcnt vmcnt({XV})"])
    stamp("6c")
    run([pvx[0], f"v_exp_f32 v{ms}, v{SEL2}", pvx[1], f"v_exp_f32 v{ms+1}, v{SEL2+1}", pvx[2],
         f"v_max3_f32 v{TMP}, abs(v{xs}), abs(v{xs+1}), abs(v{xs+2})",
         f"v_cvt_pk_bf16_f32 v{P0}, v{ms}, v{ms+1}", f"v_cvt_pk_bf16_f32 v{P1+1}, v{ms}, v{ms+1}",
         f"v_max3_f32 v{TMP}, v{TMP}, abs(v{xs+3}), abs(v{SEL2})"])
    pvm = [f"v_mfma_f32_16x16x16_bf16 {vr(LA)}, v[{ONE}:{ONE+1}], v[{P0}:{P0+1}], {vr(LA)}",
           f"v_mfma_f32_16x16x16_bf16 {vr(OA)}, v[{ACCV}:{ACCV+1}], v[{P0}:{P0+1}], {vr(OA)}",
           f"v_mfma_f32_16x16x16_bf16 {vr(OA+4)}, v[{ACCV}:{ACCV+1}], v[{P1}:{P1+1}], {vr(OA+4)}"]
    run([pvm[0], f"v_max_f32 v{TMP}, v{TMP}, abs(v{SEL2+1})", pvm[1], f"v_cmp_nge_f32 vcc, s{S_SAFE}, v{TMP}", pvm[2],
         f"s_cbranch_vccnz {N}_slow"])
    a.label(N + "_pvm")
    BACC = [VX, VX + 4, ACCQ]
    zs = [f"v_mov_b64 v[{r}:{r+1}], 0" for g in range(ng) for r in (BACC[g], BACC[g] + 2)]
    stamp("6d")
    W(3)
    RL = ms + 2
    a(f"v_rcp_f32 v{RL}, v{LA}")
    W(1)
    OF = [None] * 4
    OF[w] = ACCK
    for i, k in enumerate(others): OF[k] = [ACCK + 4, ACCV + 4, ACCQ + 4][i]
    pkm = lambda r: f"v_pk_mul_f32 v[{r}:{r+1}], v[{r}:{r+1}], v[{RL}:{RL+1}] op_sel_hi:[1,0]"
    run([pkm(OA), pkm(OA + 2), f"v_cvt_pk_bf16_f32 v{OF[w]}, v{OA}, v{OA+1}", pkm(OA + 4), f"v_cvt_pk_bf16_f32 v{OF[w]+1}, v{OA+2}, v{OA+3}", pkm(OA + 6),
         f"v_cvt_pk_bf16_f32 v{OF[w]+2}, v{OA+4}, v{OA+5}", f"v_cvt_pk_bf16_f32 v{OF[w]+3}, v{OA+6}, v{OA+7}"])
    ds.issue(f"ds_write_b128 v{L16}, {vr(OF[w])} offset:{L_TO+w*1024}", "tow")
    stamp("7")
    W(4)
    run(zs)
    sb = lambda acc, A, B: smf(acc, A, B) + " abid:1"
    ds.wait("tow")
    stamp("7a")
    a("s_barrier")
    stamp("7b")
    for k in others:
        ds.issue(f"ds_read_b128 {vr(OF[k])}, v{L16} offset:{L_TO+k*1024}", f"of{k}")
    W(4)
    def fin(g):
        c = BACC[g]
        return [f"v_cvt_pk_bf16_f32 v{c}, v{c}, v{c+1}", f"v_cvt_pk_bf16_f32 v{c+1}, v{c+2}, v{c+3}",
                f"v_and_or_b32 v{c}, v{c}, -2, s{S_TAG}",
                f"global_store_dwordx2 v{VPST}, v[{c}:{c+1}], s[{S_PW+2*g}:{S_PW+2*g+1}]{LST}"]
    pend = []
    for i in range(len(seq)):
        g, k = seq[i]
        if k != w: ds.wait(f"of{k}")
        ds.wait(f"wo{i}")
        a(sb(BACC[g], OF[k], vr(WS_[i % 6], 8)))
        if i + 6 < len(seq): run(wo_read(i + 6))
        pos = (i - ng) % 3 if i >= ng else -1
        if pos == 2:
            run(pend[:3] if len(pend) == 4 else pend)
            pend = pend[3:] + [None] + fin(g) if len(pend) == 4 else fin(g)
        elif pos == 0 and pend and len(pend) > 4:
            run(pend[0]); pend = pend[2:]
    run([x for x in pend if x])
    stamp("8")
    add64(a, S_KX, S_KX, imm=262144); add64(a, S_VX, S_VX, imm=262144)
    add64(a, S_KM, S_KM, imm=131072); add64(a, S_VM, S_VM, imm=131072)
    prep_next()
    if w <= 1:
        if w == 1:
            a(f"s_cmp_ge_u32 s{S_H}, 8\n s_cbranch_scc1 {N}_nor")
        ds.issue(f"ds_read_b128 {vr(X+16)}, v{L16} offset:{L_SEL}")
        nops(a, TUNE["rdelay"])
        RS = [X, KX]
        rl = [[f"global_load_dwordx4 {vr(r+4*k)}, v{L16}, s[{S_PR}:{S_PR+1}] offset:{k*1024} sc1" for k in range(4)] for r in RS]
        run(rl[0])
        stamp("rpolli")
        nops(a, TUNE["rgap"])
        run(rl[1])
        ds.drain()
        RA = ACCQ
        a.label(N + "_rchk")
        for si, r in enumerate(RS):
            for k in range(4):
                a(f"s_waitcnt vmcnt({7-k})")
                a(f"v_mfma_f32_16x16x32_bf16 {vr(RA)}, {vr(X+16)}, {vr(r+4*k)}, {'0' if k == 0 else vr(RA)}")
                if k == 0: a(f"v_xor_b32 v{TMP}, s{S_TAG}, v{r}")
                else: a(f"v_bitop3_b32 v{TMP}, v{TMP}, v{r+4*k}, s{S_TAG} bitop3:0xf6")
                a(f"v_bitop3_b32 v{TMP}, v{TMP}, v{r+4*k+2}, s{S_TAG} bitop3:0xf6")
            stamp("rpollw")
            a(f"v_and_b32 v{TMP}, 1, v{TMP}\n v_cmp_ne_u32 vcc, 0, v{TMP}")
            if si == 0:
                a(f"s_cbranch_vccz {N}_rok\n s_mov_b64 exec, vcc")
                run(rl[0])
                a("s_mov_b64 exec, -1")
            else:
                a(f"s_cbranch_vccnz {N}_rpoll")
        def rretry():
            a.label(N + "_rpoll")
            a("s_mov_b64 exec, vcc")
            run(rl[1])
            a(f"s_mov_b64 exec, -1\n {BOUND}\n s_branch {N}_rchk")
        ool.append(rretry)
        a.label(N + "_rok")
        a(f"""v_add_f32_dpp v{RA}, v{RA}, v{RA} row_ror:8 row_mask:0xf bank_mask:0xf
        v_add_f32_dpp v{RA+1}, v{RA+1}, v{RA+1} row_ror:8 row_mask:0xf bank_mask:0xf
        s_mov_b64 exec, s[{S_LO8}:{S_LO8+1}]
        v_cvt_pk_bf16_f32 v{RA}, v{RA}, v{RA+1}
        v_min_u32 v{RA}, -2, v{RA}
        global_store_dword v{VMST}, v{RA}, s[{S_MLW}:{S_MLW+1}]{LST}
        global_store_dword v{VMST}, v{RA}, s[{S_MRW}:{S_MRW+1}] sc1
        s_mov_b64 exec, -1
        v_mov_b64 v[{RA}:{RA+1}], 0
        v_mov_b64 v[{RA+2}:{RA+3}], 0""")
        stamp("9")
        if w == 1:
            a.label(N + "_nor")
    else:
        if w == 3 and FUSED[0]:
            a(f"""s_add_u32 s{S_T0}, s{S_STEP}, {TUNE['pfd']}
            s_and_b32 s{S_T1}, s{S_T0}, 0x47
            s_cmp_eq_u32 s{S_T1}, 0
            s_cbranch_scc1 {N}_kvw""")
            a.label(N + "_kvok")
            def kvwait():
                a.label(N + "_kvw")
                a(f"s_lshl_b32 s{S_T0}, s{S_T0}, 4\n s_add_u32 s{S_T0}, s{S_T0}, {FLG_OFF + F_KV*128}\n v_mov_b32 v{TMP}, s{S_T0}")
                a.label(N + "_kvw2")
                a(f"""global_load_dword v{TMP+1}, v{TMP}, s[{S_WS}:{S_WS+1}] sc1
                {BOUND}
                s_waitcnt vmcnt(0)
                v_readfirstlane_b32 s{S_T1}, v{TMP+1}
                s_cmp_lt_u32 s{S_T1}, 64
                s_cbranch_scc1 {N}_kvw2
                s_branch {N}_kvok""")
            ool.append(kvwait)
        stamp("9")
    if prof:
        if w < 2: a("s_barrier")
        a(f"s_waitcnt lgkmcnt(0)")
        a(f"""s_lshl_b32 s{S_T0}, s{S_SIDE}, 5
        s_add_u32 s{S_T0}, s{S_T0}, s{S_H}
        s_lshl_b32 s{S_T0}, s{S_T0}, 2
        s_add_u32 s{S_T0}, s{S_T0}, {w}
        s_lshl_b32 s{S_T0}, s{S_T0}, 6
        s_add_u32 s{S_T0}, s{S_T0}, s{S_STEP}
        s_lshl_b32 s{S_T0}, s{S_T0}, 6
        s_add_u32 s{S_T0}, s{S_T0}, {PROF_OFF}
        v_mov_b32 v{TMP}, s{S_T0}""")
        for i in range(len(STAMPS)):
            a(f"v_writelane_b32 v{TMP+1}, s{S_ST+2*i}, {i}")
        a(f"v_writelane_b32 v{TMP+1}, s{S_TRY}, 15")
        a(f"v_lshrrev_b32 v{TMP+2}, 2, v{L16}\n v_add_u32 v{TMP}, v{TMP}, v{TMP+2}\n s_mov_b64 exec, 0xffff")
        a(f"global_store_dword v{TMP}, v{TMP+1}, s[{S_WS}:{S_WS+1}]")
        a("s_mov_b64 exec, -1")
    if not prof or w >= 2: a("s_barrier")
    nops(a, TUNE["gdelay"] if not (prof and w < 2) else max(0, TUNE["gdelay"] - 30))
    a(f"s_branch {N}_loop")
    for f_ in ool: f_()
    a.label(N + "_slow")
    MX, T = TMP, TMP + 1
    a(f"""s_nop 7
    v_max3_f32 v{MX}, v{xs}, v{xs+1}, v{xs+2}
    v_max3_f32 v{MX}, v{MX}, v{xs+3}, v{SEL2}
    v_max_f32 v{MX}, v{MX}, v{SEL2+1}
    v_mov_b32 v{T}, v{MX}
    v_mov_b32_dpp v{T}, v{MX} row_shr:4 row_mask:0xf bank_mask:0xa
    v_mov_b32_dpp v{T}, v{MX} row_shl:4 row_mask:0xf bank_mask:0x5
    v_max_f32 v{MX}, v{MX}, v{T}
    v_mov_b32 v{T}, v{MX}
    v_permlane16_swap_b32 v{MX}, v{T}
    v_max_f32 v{MX}, v{MX}, v{T}
    v_mov_b32 v{T}, v{MX}
    v_permlane32_swap_b32 v{MX}, v{T}
    v_max_f32 v{MX}, v{MX}, v{T}""")
    for (d, s_) in [(PX + r, xs + r) for r in range(4)] + [(ms, SEL2), (ms + 1, SEL2 + 1)]:
        a(f"v_sub_f32 v{d}, v{s_}, v{MX}\n v_exp_f32 v{d}, v{d}")
    run(packx())
    a(f"v_cvt_pk_bf16_f32 v{P0}, v{ms}, v{ms+1}\n v_cvt_pk_bf16_f32 v{P1+1}, v{ms}, v{ms+1}")
    run(pvx); run(pvm)
    a(f"s_nop 7\n s_branch {N}_pvm")

def step_bases_w(a, w):
    s = S_STEP
    a(f"s_and_b32 s{S_TAG}, s{s}, 1")
    if w <= 1:
        for (dl, dr, k) in ((S_MLW, S_MRW, 1), (S_MLZ, S_MRZ, 2)):
            a(f"s_add_u32 s{S_T0}, s{s}, {k}\n s_and_b32 s{S_T0}, s{S_T0}, 3\n s_lshl_b32 s{S_T0}, s{S_T0}, 13")
            add64(a, dl, S_MLOC0, S_T0)
            a(f"s_lshl_b32 s{S_T0}, s{S_T0}, 1")
            add64(a, dr, S_MRW0, S_T0)

def step_bases_r(a, w):
    a(f"s_and_b32 s{S_T0}, s{S_STEP}, 3\n s_lshl_b32 s{S_T0}, s{S_T0}, 13\n s_add_u32 s{S_T1}, s{S_T0}, 2048")
    add64(a, S_MLR, S_MLOC0, S_T1)
    a(f"s_add_u32 s{S_T1}, s{S_T1}, s{S_T0}")
    add64(a, S_MRR, S_MRR0, S_T1)

def chain_init(a, P):
    a(f"""s_load_dwordx2 s[4:5], s[0:1], {A_MEM0}
    s_load_dwordx4 s[8:11], s[0:1], {A_WQ}
    s_load_dwordx4 s[76:79], s[0:1], {A_WV}
    v_and_b32 v8, 63, v0
    v_lshlrev_b32 v{L16}, 4, v8
    v_and_b32 v9, 15, v8
    v_lshrrev_b32 v10, 4, v8
    s_mov_b32 s{S_HI4}, 0xf0f0f0f0
    s_mov_b32 s{S_HI4+1}, 0xf0f0f0f0
    s_mov_b32 s{S_LO8}, 0x00ff00ff
    s_mov_b32 s{S_LO8+1}, 0x00ff00ff
    s_mov_b32 s{S_ODDG}, 0xffff0000
    s_mov_b32 s{S_ODDG+1}, 0xffff0000
    s_mov_b32 s{S_C}, {f32bits(128**-0.5 * math.log2(math.e))}
    s_mov_b32 s{S_SAFE}, {f32bits(-1.0 if TUNE["force_slow"] else SAFE_T)}
    v_bfe_u32 v11, v8, 1, 1
    v_mul_u32_u24 v11, 0xaaaa, v11
    v_bfe_u32 v12, v8, 2, 1
    v_mul_u32_u24 v12, 0xaaaa, v12
    v_lshl_or_b32 v11, v12, 16, v11
    v_or_b32 v{IDX}, 0x44444444, v11
    ; VTW = (l&15)*16 + (l>>4)*4
    v_lshlrev_b32 v11, 4, v9
    v_lshl_add_u32 v{VTW}, v10, 2, v11
    ; VTR = (l>>2)*16 + ((l>>1)&1)*8
    v_lshrrev_b32 v11, 2, v8
    v_lshlrev_b32 v11, 4, v11
    v_bfe_u32 v12, v8, 1, 1
    v_lshl_add_u32 v{VTR}, v12, 3, v11
    ; VPST = (l>>4)*4096 + (l&15)*8 + h*128
    v_lshlrev_b32 v11, 12, v10
    v_lshl_add_u32 v11, v9, 3, v11
    s_lshl_b32 s{S_T0}, s{S_H}, 7
    v_add_u32 v{VPST}, s{S_T0}, v11
    s_lshl_b32 s{S_T0}, s{S_W}, 14
    s_add_u32 s{S_T0}, s{S_T0}, {L_WV}
    v_add_u32 v{VWV}, s{S_T0}, v{L16}
    s_lshl_b32 s{S_U}, s{S_W}, 5
    s_add_u32 s{S_U}, s{S_U}, s{S_H}
    s_lshl_b32 s{S_U12}, s{S_U}, 12
    ; VMST = (u>>2)*512 + (u&1)*256 + ((u>>1)&1)*128 + (4*(g'>>1) + 2*(p&1) + (g'&1))*16 + (p>>1)*4
    s_lshr_b32 s{S_T0}, s{S_U}, 2
    s_lshl_b32 s{S_T0}, s{S_T0}, 9
    s_and_b32 s{S_T1}, s{S_U}, 1
    s_lshl_b32 s{S_T1}, s{S_T1}, 8
    s_add_u32 s{S_T0}, s{S_T0}, s{S_T1}
    s_and_b32 s{S_T1}, s{S_U}, 2
    s_lshl_b32 s{S_T1}, s{S_T1}, 6
    s_add_u32 s{S_T0}, s{S_T0}, s{S_T1}
    v_lshrrev_b32 v11, 5, v8
    v_lshlrev_b32 v11, 2, v11
    v_and_b32 v12, 1, v8
    v_lshl_add_u32 v11, v12, 1, v11
    v_and_b32 v12, 1, v10
    v_add_u32 v11, v11, v12
    v_lshlrev_b32 v11, 4, v11
    v_bfe_u32 v12, v8, 1, 2
    v_lshl_add_u32 v11, v12, 2, v11
    v_add_u32 v{VMST}, s{S_T0}, v11
    """)
    a(f"s_lshl_b32 s{S_T0}, s{S_H}, 13\n s_add_u32 s{S_T1}, s{S_T0}, {KX_OFF+4096}")
    add64(a, S_KX, S_WS, S_T1)
    a(f"s_add_u32 s{S_T1}, s{S_T0}, {VX_OFF+4096}")
    add64(a, S_VX, S_WS, S_T1)
    a(f"s_lshl_b32 s{S_T0}, s{S_H}, 12\n s_add_u32 s{S_T1}, s{S_T0}, {KM_OFF}")
    add64(a, S_KM, S_WS, S_T1)
    a(f"s_lshl_b32 s{S_T0}, s{S_H}, 12\n s_add_u32 s{S_T1}, s{S_T0}, {VM_OFF}")
    add64(a, S_VM, S_WS, S_T1)
    a(f"s_lshl_b32 s{S_T0}, s{S_SIDE}, 19\n s_add_u32 s{S_T1}, s{S_T0}, {PART_OFF}")
    add64(a, S_PART0, S_WS, S_T1)
    a(f"s_lshl_b32 s{S_T0}, s{S_SIDE}, 15\n s_add_u32 s{S_T1}, s{S_T0}, {MLOC_OFF}")
    add64(a, S_MLOC0, S_WS, S_T1)
    a(f"s_lshl_b32 s{S_T0}, s{S_SIDE}, 16\n s_add_u32 s{S_T1}, s{S_T0}, {MREM_OFF}")
    add64(a, S_MRW0, S_WS, S_T1)
    a(f"s_xor_b32 s{S_T0}, s{S_T0}, 0x10000\n s_add_u32 s{S_T1}, s{S_T0}, {MREM_OFF}")
    add64(a, S_MRR0, S_WS, S_T1)
    a("s_waitcnt lgkmcnt(0)")
    a(f"""s_or_b32 s{S_T0}, s{S_SIDE}, s{S_U}
    s_cmp_lg_u32 s{S_T0}, 0
    s_cbranch_scc1 {P}_nocal
    s_mov_b64 exec, 1
    v_mov_b32 v11, {MREM_OFF+0x20000}
    v_mov_b32 v12, {MREM_OFF+0x20000+8192}""")
    for rep in range(2):
        for i, v in enumerate((11, 12)):
            a(f"""s_memtime s[80:81]
            s_waitcnt lgkmcnt(0)
            global_store_dword v{v}, v9, s[{S_WS}:{S_WS+1}] sc1
            s_waitcnt vmcnt(0)
            s_memtime s[82:83]
            s_waitcnt lgkmcnt(0)
            s_sub_u32 s{84+i}, s82, s80""")
    a(f"""s_cmp_lt_u32 s85, s84
    s_cselect_b32 s{S_T0}, 8192, 0
    v_mov_b32 v11, s{S_T0}
    v_mov_b32 v12, 44
    global_store_dword v12, v11, s[{S_DBG}:{S_DBG+1}] sc1
    s_mov_b64 exec, -1""")
    a.label(P + "_nocal")
    a(f"""s_cmp_ge_u32 s{S_U}, 40
    s_cbranch_scc1 {P}_noinit
    s_and_b32 s{S_T0}, s{S_U}, 2
    s_lshl_b32 s{S_T0}, s{S_T0}, 1
    v_add_u32 v11, s{S_T0}, v10
    v_mul_u32_u24 v11, 1280, v11
    v_and_b32 v12, 7, v8
    v_lshl_add_u32 v11, v12, 2, v11
    s_lshr_b32 s{S_T0}, s{S_U}, 2
    s_lshl_b32 s{S_T0}, s{S_T0}, 6
    s_and_b32 s{S_T1}, s{S_U}, 1
    s_lshl_b32 s{S_T1}, s{S_T1}, 5
    s_add_u32 s{S_T0}, s{S_T0}, s{S_T1}
    s_mul_i32 s{S_T1}, s{S_SIDE}, 640
    s_add_u32 s{S_T0}, s{S_T0}, s{S_T1}
    v_add_u32 v11, s{S_T0}, v11
    global_load_dword v13, v11, s[4:5]
    v_mov_b64 v[16:17], -1
    v_mov_b64 v[18:19], -1
    s_lshl_b32 s{S_T0}, s{S_U}, 12
    v_add_u32 v11, s{S_T0}, v{L16}
    v_add_u32 v12, 0x40000, v11""")
    for k in range(4):
        a(f"global_store_dwordx4 v11, v[16:19], s[{S_PART0}:{S_PART0+1}] offset:{k*1024} sc1")
        a(f"global_store_dwordx4 v12, v[16:19], s[{S_PART0}:{S_PART0+1}] offset:{k*1024} sc1")
    for sl in range(1, 4):
        a(f"v_add_u32 v11, {sl*8192}, v{VMST}\n global_store_dword v11, v16, s[{S_MLOC0}:{S_MLOC0+1}] sc1")
    for sl in range(2, 8):
        a(f"v_add_u32 v11, {sl*8192}, v{VMST}\n global_store_dword v11, v16, s[{S_MRW0}:{S_MRW0+1}] sc1")
    a(f"""s_waitcnt vmcnt(0)
    v_min_u32 v13, -2, v13
    v_add_u32 v11, 8192, v{VMST}
    global_store_dword v{VMST}, v13, s[{S_MLOC0}:{S_MLOC0+1}] sc1
    global_store_dword v{VMST}, v13, s[{S_MRW0}:{S_MRW0+1}] sc1
    global_store_dword v11, v13, s[{S_MRW0}:{S_MRW0+1}] sc1""")
    a.label(P + "_noinit")
    a(f"""s_waitcnt vmcnt(0)
    s_barrier
    s_cmp_lg_u32 s{S_W}, 0
    s_cbranch_scc1 {P}_noarr
    s_mov_b64 exec, 1
    v_mov_b32 v11, 40
    v_mov_b32 v12, 1
    global_atomic_add v11, v12, s[{S_DBG}:{S_DBG+1}] sc1
    s_mov_b64 exec, -1""")
    a.label(P + "_noarr")
    a(f"""v_lshlrev_b32 v11, 1, v10
    v_xor_b32 v11, v11, v9
    v_lshlrev_b32 v11, 4, v11
    v_lshl_add_u32 v11, v10, 13, v11
    s_lshl_b32 s{S_T0}, s{S_W}, 17
    s_lshl_b32 s{S_T1}, s{S_H}, 8
    s_add_u32 s{S_T0}, s{S_T0}, s{S_T1}
    v_add_u32 v14, s{S_T0}, v11
    v_add_u32 v15, 0x8000, v14
    v_xor_b32 v16, 128, v14
    v_add_u32 v16, 0x10000, v16
    v_add_u32 v17, 0x8000, v16
    v_lshrrev_b32 v11, 3, v8
    v_mul_u32_u24 v11, 1280, v11
    v_and_b32 v12, 7, v8
    v_lshl_add_u32 v11, v12, 4, v11
    s_mul_i32 s{S_T0}, s{S_H}, 163840
    s_mul_i32 s{S_T1}, s{S_W}, {32*1280}
    s_add_u32 s{S_T0}, s{S_T0}, s{S_T1}
    s_mul_i32 s{S_T1}, s{S_SIDE}, 640
    s_add_u32 s{S_T0}, s{S_T0}, s{S_T1}
    v_add_u32 v18, s{S_T0}, v11
    v_add_u32 v19, {8*1280}, v18
    v_add_u32 v20, {16*1280}, v18
    v_add_u32 v21, {24*1280}, v18
    v_lshrrev_b32 v11, 2, v9
    v_and_b32 v12, 1, v10
    v_lshl_or_b32 v12, v12, 2, v11
    v_lshlrev_b32 v12, 1, v12
    v_bfe_u32 v13, v8, 1, 1
    s_lshl_b32 s{S_T0}, s{S_W}, 2
    v_add_u32 v13, s{S_T0}, v13
    v_xor_b32 v12, v12, v13
    v_lshlrev_b32 v12, 4, v12
    v_lshl_add_u32 v11, v10, 3, v11
    v_lshl_add_u32 v12, v11, 8, v12
    v_and_b32 v11, 1, v8
    v_lshl_add_u32 v22, v11, 3, v12
    v_xor_b32 v23, 32, v22
    v_and_b32 v11, 1, v10
    v_lshlrev_b32 v11, 4, v11
    v_lshrrev_b32 v12, 1, v10
    v_lshl_add_u32 v11, v12, 2, v11
    v_bfe_u32 v12, v8, 2, 1
    v_add_u32 v11, v11, v12
    v_lshlrev_b32 v11, 7, v11
    v_bfe_u32 v12, v8, 3, 1
    v_lshl_add_u32 v11, v12, 5, v11
    v_and_b32 v12, 3, v8
    v_lshl_add_u32 v24, v12, 3, v11
    """)

def chain_weights(a, P, w):
    bases = [8, 10, 76]
    NCH = 35
    D = 9
    def dma(i):
        slot = (i % 10) * 16384 + w * 4096
        if i < 30:
            m, beta = divmod(i, 10)
            a(f"""s_mul_i32 s{S_T0}, s{S_SIDE}, {5 if beta < 5 else -5}
            s_add_u32 s{S_T0}, s{S_T0}, {beta}
            s_lshl_b32 s{S_T0}, s{S_T0}, 19""")
            add64(a, S_PF, bases[m], S_T0)
            regs = [14, 15, 16, 17]
        else:
            add64(a, S_PF, 78, imm=(i - 30) * 128)
            regs = [18, 19, 20, 21]
        for k in range(4):
            a(f"s_mov_b32 m0, {slot + k*1024}\n global_load_lds_dwordx4 v{regs[k]}, s[{S_PF}:{S_PF+1}]")
    for i in range(D): dma(i)
    HOLD = 32
    for i in range(NCH):
        inflight = min(NCH, i + D) - (i + 1)
        a(f"s_waitcnt vmcnt({4*inflight})\n s_barrier")
        if i + D < NCH: dma(i + D)
        slot = (i % 10) * 16384
        if i < 30:
            m, beta = divmod(i, 10)
            a(f"v_add_u32 v25, {slot}, v22\n v_add_u32 v26, {slot}, v23")
            for t in range(2):
                j = 2 * beta + t
                if m == 0: k_, base = "a", 8 * j
                elif m == 1: k_, base = ("a", 160 + 8 * j) if j < 12 else ("v", WKV + 8 * (j - 12))
                else: k_, base = ("v", HOLD + 8 * j) if j < 8 else ("v", WVV + 8 * (j - 8))
                for p, rowoff in enumerate((0, 4, 32, 36)):
                    a(f"ds_read_b64_tr_b16 {k_}[{base+2*p}:{base+2*p+1}], v{25+t} offset:{rowoff*256}")
        else:
            cb = i - 30
            for gi, gam in enumerate(GROUPS[w]):
                if gam >> 1 != cb: continue
                a(f"v_add_u32 v25, {slot + (gam & 1)*64}, v24")
                for k in range(4):
                    for p, eoff in enumerate((0, 2, 8, 10)):
                        a(f"ds_read_b64_tr_b16 v[{8+2*p}:{9+2*p}], v25 offset:{(32*k+eoff)*128}")
                    a("s_waitcnt lgkmcnt(0)")
                    a(f"ds_write_b128 v{VWO}, v[8:11] offset:{(gi*4+k)*2048}")
                    a(f"ds_write_b128 v{VWO}, v[12:15] offset:{(gi*4+k)*2048+1024}")
        a("s_waitcnt lgkmcnt(0)")
    a("s_barrier")
    for j in range(8):
        a(f"ds_write_b128 v{VWV}, {vr(HOLD+8*j)} offset:{j*2048}")
        a(f"ds_write_b128 v{VWV}, {vr(HOLD+8*j+4)} offset:{j*2048+1024}")
    if w == 0:
        a(f"""v_bfe_u32 v8, v{L16}, 4, 4
        v_lshrrev_b32 v9, 3, v8
        v_and_b32 v10, 3, v8
        v_lshl_add_u32 v9, v10, 1, v9
        v_and_b32 v10, 4, v8
        v_lshlrev_b32 v10, 2, v10
        v_mov_b32 v11, 0x3f80
        v_lshlrev_b32 v10, v10, v11""")
        for d in range(4):
            a(f"v_cmp_eq_u32 vcc, {d}, v9\n v_cndmask_b32 v{12+d}, 0, v10, vcc")
        a(f"ds_write_b128 v{L16}, v[12:15] offset:{L_SEL}")
        a(f"s_mov_b32 s{S_TRY}, 0\n v_mov_b32 v8, 40")
        a.label(P + "_cbar")
        a(f"""global_load_dwordx2 v[10:11], v8, s[{S_DBG}:{S_DBG+1}] sc1
        s_add_u32 s{S_TRY}, s{S_TRY}, 1
        s_cmp_gt_u32 s{S_TRY}, {MAXTRY}
        s_cbranch_scc1 {P}_fail
        s_waitcnt vmcnt(0)
        v_readfirstlane_b32 s{S_T0}, v10
        s_cmp_lt_u32 s{S_T0}, 64
        s_cbranch_scc1 {P}_cbar""")
        if FUSED[0]:
            for nm, base, off, tgt in (("ini", S_DBG, 4 * D_INIT, 1), ("kv0", S_WS, FLG_OFF + F_KV * 128, 64)):
                a(f"v_mov_b32 v8, {off}")
                a.label(f"{P}_c{nm}")
                a(f"""global_load_dword v10, v8, s[{base}:{base+1}] sc1
                s_add_u32 s{S_TRY}, s{S_TRY}, 1
                s_cmp_gt_u32 s{S_TRY}, {MAXTRY}
                s_cbranch_scc1 {P}_fail
                s_waitcnt vmcnt(0)
                v_readfirstlane_b32 s{S_T0}, v10
                s_cmp_lt_u32 s{S_T0}, {tgt}
                s_cbranch_scc1 {P}_c{nm}""")
    a("s_waitcnt lgkmcnt(0)\n s_barrier")
    a(f"""v_mov_b32 v8, 44
    global_load_dword v9, v8, s[{S_DBG}:{S_DBG+1}] sc1
    s_waitcnt vmcnt(0)
    v_readfirstlane_b32 s{S_T0}, v9
    s_and_b32 s{S_T0}, s{S_T0}, 8192""")
    add64(a, S_MRW0, S_MRW0, S_T0)
    add64(a, S_MRR0, S_MRR0, S_T0)
    a(f"""s_mov_b32 s{S_STEP}, 0
    s_cmp_eq_u32 s{S_SIDE}, 0
    s_cselect_b32 s{S_PUBV}, -1, 0
    s_cselect_b32 s{S_PUBV+1}, 0, -1
    s_and_b32 s{S_PUBK}, s{S_PUBV}, 0x0f0f0f0f
    s_and_b32 s{S_PUBK+1}, s{S_PUBV+1}, 0x0f0f0f0f""")
    step_bases_r(a, w)
    for g, gam in enumerate(GROUPS[w]):
        add64(a, S_PW + 2 * g, S_PART0, imm=gam * 16384)
    add64(a, S_PR, S_PART0, S_U12)
    a(f"""s_lshl_b32 s{S_T0}, s{S_SIDE}, 5
    s_add_u32 s{S_T0}, s{S_T0}, s{S_H}
    s_lshl_b32 s{S_T0}, s{S_T0}, 7
    s_add_u32 s{S_T0}, s{S_T0}, {FLG_OFF + F_CH*128}""")
    add64(a, S_FL, S_WS, S_T0)

def chain_body(a, P, prof=False, modes=(True,)):
    lp = prof or TUNE["lprof"]
    if lp: a("s_memrealtime s[100:101]\n s_waitcnt lgkmcnt(0)\n s_mov_b32 s3, s100")
    chain_init(a, P)
    for w in range(1, 4):
        a(f"s_cmp_eq_u32 s{S_W}, {w}\n s_cbranch_scc1 {P}_wave{w}")
    for w in range(4):
        a.label(f"{P}_wave{w}")
        a(f"v_add_u32 v{VWO}, {L_WO + GROUPS[w][0]*8192}, v{L16}")
        chain_weights(a, P, w)
        if lp: a("s_memrealtime s[100:101]\n s_memtime s[10:11]\n s_waitcnt lgkmcnt(0)\n s_mov_b32 s11, s100")
        if FUSED[0]:
            a(f"s_cmp_eq_u32 s{S_MODE}, 2\n s_cbranch_scc1 {P}_slowmode{w}")
        chain_loop(a, P, w, True, prof)
        if FUSED[0]:
            a.label(f"{P}_slowmode{w}")
            chain_loop(a, P, w, False, prof)
    a.label(P + "_fail")
    a(f"""v_mov_b32 v8, 48
    v_mov_b32 v9, s{S_STEP}
    v_add_u32 v9, 0x1000, v9
    global_store_dword v8, v9, s[{S_DBG}:{S_DBG+1}] sc1
    s_waitcnt vmcnt(0)
    s_endpgm""")
    a.label(P + "_done")
    if lp:
        a(f"""s_memrealtime s[100:101]
        s_memtime s[98:99]
        s_or_b32 s{S_T0}, s{S_SIDE}, s{S_U}
        s_cmp_lg_u32 s{S_T0}, 0
        s_cbranch_scc1 {P}_done2
        s_waitcnt lgkmcnt(0)
        s_sub_u32 s5, s100, s11
        s_sub_u32 s4, s11, s3
        s_sub_u32 s98, s98, s10
        v_mov_b32 v8, s4
        v_mov_b32 v9, s5
        v_mov_b32 v10, s98
        v_mov_b32 v11, s3
        v_mov_b32 v12, 240
        global_store_dwordx4 v12, v[8:11], s[{S_DBG}:{S_DBG+1}] sc1
        {P}_done2:""")
    a("s_waitcnt vmcnt(0)")
    if FUSED[0]:
        a(f"""s_barrier
        v_mov_b32 v8, 64
        s_mov_b64 exec, 1
        global_store_dword v{L16}, v8, s[{S_FL}:{S_FL+1}] sc1
        s_waitcnt vmcnt(0)""")
    a("s_endpgm")

def chain_kernel(name, prof=False, X0=0, X1=2):
    a = Asm()
    P = "ch"
    a(f"""s_cmp_ge_u32 s2, 256
    s_cbranch_scc1 {P}_exit
    s_load_dwordx4 s[12:15], s[0:1], {A_DBG}
    s_getreg_b32 s{S_XCC}, hwreg(HW_REG_XCC_ID)
    s_and_b32 s{S_XCC}, s{S_XCC}, 7
    v_lshrrev_b32 v1, 6, v0
    v_readfirstlane_b32 s{S_W}, v1
    s_waitcnt lgkmcnt(0)
    s_cmp_lg_u32 s{S_W}, 0
    s_cbranch_scc1 {P}_noat
    s_lshl_b32 s{S_T0}, s{S_XCC}, 2
    v_mov_b32 v2, s{S_T0}
    v_mov_b32 v3, 1
    s_mov_b64 exec, 1
    global_atomic_add v4, v2, v3, s[{S_DBG}:{S_DBG+1}] sc0 sc1
    v_mov_b32 v2, 0
    s_waitcnt vmcnt(0)
    ds_write_b32 v2, v4
    s_waitcnt lgkmcnt(0)
    s_mov_b64 exec, -1
    {P}_noat:
    s_barrier
    v_mov_b32 v2, 0
    ds_read_b32 v4, v2
    s_waitcnt lgkmcnt(0)
    v_readfirstlane_b32 s{S_H}, v4
    s_barrier
    s_cmp_ge_u32 s{S_H}, 32
    s_cbranch_scc1 {P}_exit
    s_mov_b32 s{S_SIDE}, 0
    s_cmp_eq_u32 s{S_XCC}, {X0}
    s_cbranch_scc1 {P}_go
    s_mov_b32 s{S_SIDE}, 1
    s_cmp_eq_u32 s{S_XCC}, {X1}
    s_cbranch_scc1 {P}_go
    {P}_exit:
    s_endpgm
    {P}_go:""")
    chain_body(a, P, prof)
    return a
```

```python
KX_OFF = 0x0000000
VX_OFF = 0x1000000
QX_OFF = 0x2000000
OX_OFF = 0x3000000
XN_OFF = 0x4000000
HX_OFF = 0x4400000
YB_OFF = 0x4C00000
KM_OFF = 0x5000000
VM_OFF = 0x5800000
PART_OFF = 0x6000000
MLOC_OFF = 0x6100000
MREM_OFF = 0x6200000
PROF_OFF = 0x6400000
A_X, A_MEM0, A_WQ, A_WK, A_WV, A_WO, A_SEG, B_X, B_WG, B_WU, B_WD, A_OUT, A_DBG, A_WS = [8 * i for i in range(14)]
SLAB_OFF = 0x7000000
FLG_OFF = 0x6300000
F_LN, F_KV, F_Q, F_F1, F_F2, F_CH, F_AO = 0, 8, 16, 24, 32, 64, 128
FLG_BYTES = 192 * 128
D_TOT, D_MODE, D_CBAR, D_NEAR, D_FAIL, D_INIT, D_QLN = 8, 9, 10, 11, 12, 13, 14
D_QKV, D_QQF, D_QF2, D_ROLE, D_QRED, D_AOSEG = 16, 24, 32, 33, 34, 40
```

```python
from asmlib import *
from layout import *
from gemm import *

def add64(a, d, s, off):
    a(f"s_add_u32 s{d}, s{s}, {off}\n s_addc_u32 s{d+1}, s{s+1}, 0")

def task_qkv(a, L, S_RB, S_CB, ST=""):
    a(f"""s_lshr_b32 s44, s{S_CB}, 5
    s_and_b32 s45, s{S_CB}, 31
    s_cmp_eq_u32 s44, 0
    s_cselect_b32 s{G_B0}, s6, s8
    s_cselect_b32 s{G_B0+1}, s7, s9
    s_cmp_eq_u32 s44, 2
    s_cselect_b32 s{G_B0}, s4, s{G_B0}
    s_cselect_b32 s{G_B0+1}, s5, s{G_B0+1}
    s_lshl_b32 s{G_T0}, s45, 8""")
    add64(a, G_B0, G_B0, f"s{G_T0}")
    a(f"s_mul_i32 s{G_T0}, s{S_RB}, {16*20480}\n s_add_u32 s{G_T0}, s{G_T0}, {XN_OFF}")
    add64(a, G_A, G_WS, f"s{G_T0}")
    a(f"""s_lshl_b32 s{G_T0}, s{S_RB}, 21
    s_lshl_b32 s{G_T1}, s45, 13
    s_add_u32 s{G_T0}, s{G_T0}, s{G_T1}
    s_lshl_b32 s{G_T1}, s44, 24
    s_add_u32 s{G_T0}, s{G_T0}, s{G_T1}""")
    add64(a, G_O, G_WS, f"s{G_T0}")
    gemm_setup(a, 8, "nat", 20, 8192, False, "tile")
    a(f"s_cmp_eq_u32 s44, 1\n s_cbranch_scc1 {L}_v")
    gemm_main(a, L + "_qk", 8, "nat", 10, True)
    epi_qk(a, 8, ST)
    a(f"s_branch {L}_done")
    a.label(L + "_v")
    gemm_main(a, L + "_v", 8, "nat", 10, False)
    epi_v(a, 8, ST)
    a.label(L + "_done")

def task_f1(a, L, S_RB, S_CB, ST=""):
    a(f"s_lshl_b32 s{G_T0}, s{S_CB}, 7")
    add64(a, G_B0, 4, f"s{G_T0}"); add64(a, G_B1, 6, f"s{G_T0}")
    a(f"s_mul_i32 s{G_T0}, s{S_RB}, {16*20480}\n s_add_u32 s{G_T0}, s{G_T0}, {XN_OFF}")
    add64(a, G_A, G_WS, f"s{G_T0}")
    a(f"""s_mul_i32 s{G_T0}, s{S_RB}, {16*54*1024}
    s_lshl_b32 s{G_T1}, s{S_CB}, 11
    s_add_u32 s{G_T0}, s{G_T0}, s{G_T1}
    s_add_u32 s{G_T0}, s{G_T0}, {HX_OFF}""")
    add64(a, G_O, G_WS, f"s{G_T0}")
    gemm_setup(a, 8, "nat", 20, 3456, True, "tile")
    gemm_main(a, L, 8, "nat", 10, True)
    epi_h(a, 8, ST)

def task_fin(a, L, MT, S_RB, S_CB, final, ST="", LD=""):
    ks = 128 if final else 54
    a(f"s_lshl_b32 s46, s{S_CB}, 8")
    add64(a, G_B0, 4, "s46")
    a(f"s_mul_i32 s{G_T0}, s{S_RB}, {2*MT*ks*1024}\n s_add_u32 s{G_T0}, s{G_T0}, {OX_OFF if final else HX_OFF}")
    add64(a, G_A, G_WS, f"s{G_T0}")
    a(f"s_mul_i32 s{G_T0}, s{S_RB}, {2*MT*16*1280}\n s_add_u32 s{G_T0}, s{G_T0}, s46\n s_add_u32 s{G_T1}, s{G_T0}, {YB_OFF}")
    if final:
        add64(a, G_O, 8, f"s{G_T0}"); add64(a, G_X, 6, f"s{G_T0}"); add64(a, G_Y, G_WS, f"s{G_T1}")
    else:
        add64(a, G_O, G_WS, f"s{G_T1}")
    gemm_setup(a, MT, "perm", ks, 1280, False, "pair")
    gemm_main(a, L, MT, "perm", ks // 2, True)
    if final: epi_out(a, MT, LD)
    else: epi_y(a, MT, ST)
```

```python
import sys, subprocess
sys.path.insert(0, "cdna_kernels")
from asmlib import *
from layout import *
import chain, gemm, misc, ao
from gemm import *
from tasks import *

NAME = "parallel_sum__memory_aug_recurrent_mem_tr__glu_gated_reglu__prompt"
OPT = dict(X0=0, X1=2, force_mode=0, prof=0, nao=160, wprof=0)
for x in sys.argv[2:]:
    k, v = x.split("=")
    if k in OPT: OPT[k] = int(v)
    elif k == "st": chain.STAMPS[:] = v.split(",")
    else: chain.TUNE[k] = int(v)
chain.FUSED[0] = True
S_DBG, S_XCC = 12, 18
BC = 163840 - 64
S_Q, S_IT, S_N, S_RB, S_CB, S_HG, S_SEG, S_OKRB, S_TRY = 48, 49, 50, 42, 43, 51, 52, 53, 54
MAXW = 1 << 20
dbg = f"s[{S_DBG}:{S_DBG+1}]"
ws = f"s[{G_WS}:{G_WS+1}]"

def w0(a, lbl):
    a(f"s_cmp_lg_u32 s{G_W}, 0\n s_cbranch_scc1 {lbl}\n s_mov_b64 exec, 1")
def w0end(a, lbl):
    a("s_mov_b64 exec, -1"); a.label(lbl)
def atomic_ret(a, idx, dst):
    if isinstance(idx, int): a(f"v_mov_b32 v124, {4*idx}")
    else: a(f"s_lshl_b32 s{G_T0}, s{idx[1]}, 2\n v_mov_b32 v124, s{G_T0}")
    a(f"v_mov_b32 v125, 1\n global_atomic_add v126, v124, v125, {dbg} sc0 sc1\n s_waitcnt vmcnt(0)\n v_readfirstlane_b32 s{dst}, v126")
def bcast_put(a, regs):
    a(f"v_mov_b32 v124, {BC}")
    for i, r in enumerate(regs): a(f"v_mov_b32 v125, s{r}\n ds_write_b32 v124, v125 offset:{4*i}")
    a("s_waitcnt lgkmcnt(0)")
def bcast_get(a, regs):
    a(f"s_barrier\n v_mov_b32 v124, {BC}")
    for i, r in enumerate(regs):
        a(f"ds_read_b32 v125, v124 offset:{4*i}\n s_waitcnt lgkmcnt(0)\n v_readfirstlane_b32 s{r}, v125")
def poll(a, base, off_code, target, sleep=2):
    l = a.uid("poll")
    a(off_code)
    a.label(l)
    a(f"""global_load_dword v125, v124, {base} sc1
    s_add_u32 s{S_TRY}, s{S_TRY}, 1
    s_cmp_gt_u32 s{S_TRY}, {MAXW}
    s_cbranch_scc1 wk_fail
    s_waitcnt vmcnt(0)
    v_readfirstlane_b32 s{G_T1}, v125
    s_cmp_ge_u32 s{G_T1}, {target}
    s_cbranch_scc1 {l}_ok
    s_sleep {sleep}
    s_branch {l}""")
    a.label(l + "_ok")
def flag_addr(line0, sreg, shift=0):
    sh = f"s_lshr_b32 s{G_T0}, s{sreg}, {shift}\n s_lshl_b32 s{G_T0}, s{G_T0}, 7" if shift else f"s_lshl_b32 s{G_T0}, s{sreg}, 7"
    return f"{sh}\n s_add_u32 s{G_T0}, s{G_T0}, {FLG_OFF + line0*128}\n v_mov_b32 v124, s{G_T0}"
def signal(a, line0, sreg, shift=0):
    l = a.uid("sig")
    a("s_waitcnt vmcnt(0)\n s_barrier")
    w0(a, l)
    a(flag_addr(line0, sreg, shift))
    a(f"v_mov_b32 v125, 1\n global_atomic_add v124, v125, {ws} sc1")
    w0end(a, l)

def wstamp(a, idx):
    if not OPT["wprof"]: return
    l = a.uid("ws")
    w0(a, l)
    a(f"""s_memrealtime s[56:57]
    s_lshl_b32 s{G_T0}, s47, 6
    s_add_u32 s{G_T0}, s{G_T0}, {PROF_OFF + 0x200000 + 4*idx}
    v_mov_b32 v124, s{G_T0}
    s_waitcnt lgkmcnt(0)
    v_mov_b32 v125, s56
    global_store_dword v124, v125, {ws}""")
    w0end(a, l)

def build():
    a = Asm()
    X0, X1 = OPT["X0"], OPT["X1"]
    S_R, S_T, S_MODE = 46, 47, chain.S_MODE
    a(f"""s_cmp_ge_u32 s2, 256
    s_cbranch_scc1 wk_exit
    s_load_dwordx4 s[12:15], s[0:1], {A_DBG}
    s_getreg_b32 s{S_XCC}, hwreg(HW_REG_XCC_ID)
    s_and_b32 s{S_XCC}, s{S_XCC}, 7
    v_mov_b32 v127, v0
    v_lshrrev_b32 v1, 6, v0
    v_readfirstlane_b32 s{G_W}, v1
    s_mov_b32 s{S_TRY}, 0
    s_waitcnt lgkmcnt(0)""")
    w0(a, "el_skip")
    atomic_ret(a, ("s", S_XCC), S_R)
    atomic_ret(a, D_TOT, S_T)
    a(f"""s_mov_b32 s{S_MODE}, 0
    s_cmp_eq_u32 s{S_XCC}, {X0}
    s_cselect_b32 s44, 1, 0
    s_cmp_eq_u32 s{S_XCC}, {X1}
    s_cselect_b32 s44, 1, s44
    s_cmp_lt_u32 s{S_R}, 32
    s_cselect_b32 s44, s44, 0
    s_cmp_lt_u32 s{S_T}, 64
    s_cselect_b32 s45, 2, 0
    s_or_b32 s44, s44, s45
    s_cmp_eq_u32 s44, 0
    s_cbranch_scc1 el_done
    v_mov_b32 v124, 0
    el_loop:
    global_load_dword v2, v124, {dbg} offset:{4*X0} sc1
    global_load_dword v3, v124, {dbg} offset:{4*X1} sc1
    global_load_dwordx2 v[4:5], v124, {dbg} offset:{4*D_TOT} sc1
    s_add_u32 s{S_TRY}, s{S_TRY}, 1
    s_cmp_gt_u32 s{S_TRY}, {MAXW}
    s_cbranch_scc1 wk_fail
    s_waitcnt vmcnt(0)
    v_readfirstlane_b32 s{S_MODE}, v5
    v_min_u32 v2, v2, v3
    s_cmp_lg_u32 s{S_MODE}, 0
    s_cbranch_scc1 el_done
    v_readfirstlane_b32 s{G_T0}, v2
    v_readfirstlane_b32 s{G_T1}, v4
    s_mov_b32 s45, 1
    s_cmp_ge_u32 s{G_T0}, {32 if not OPT['force_mode'] else 1000}
    s_cbranch_scc1 el_cas
    s_mov_b32 s45, 2
    s_cmp_lt_u32 s{G_T1}, 64
    s_cbranch_scc1 el_loop
    s_cmp_gt_u32 s{S_TRY}, {3000 if not OPT['force_mode'] else 3}
    s_cbranch_scc0 el_loop
    el_cas:
    v_mov_b32 v2, s45
    v_mov_b32 v3, 0
    global_atomic_cmpswap v4, v124, v[2:3], {dbg} offset:{4*D_MODE} sc0 sc1
    s_waitcnt vmcnt(0)
    v_readfirstlane_b32 s{S_MODE}, v4
    s_cmp_eq_u32 s{S_MODE}, 0
    s_cselect_b32 s{S_MODE}, s45, s{S_MODE}
    el_done:
    s_and_b32 s{S_MODE}, s{S_MODE}, s44""")
    bcast_put(a, [S_MODE, S_R, S_T])
    w0end(a, "el_skip")
    bcast_get(a, [S_MODE, S_R, S_T])
    a(f"s_cmp_gt_u32 s{S_MODE}, 2\n s_cbranch_scc1 wk_exit")
    wstamp(a, 0)
    a(f"""s_cmp_lg_u32 s{S_T}, 0
    s_cbranch_scc1 el_noinit
    v_lshlrev_b32 v2, 4, v127
    v_add_u32 v2, {FLG_OFF}, v2
    v_mov_b64 v[4:5], 0
    v_mov_b64 v[6:7], 0""")
    for k in range(FLG_BYTES // 4096):
        if k: a("v_add_u32 v2, 4096, v2")
        a(f"global_store_dwordx4 v2, v[4:7], {ws} sc1")
    a("s_waitcnt vmcnt(0)\n s_barrier")
    w0(a, "el_noinit")
    a(f"v_mov_b32 v2, {4*D_INIT}\n v_mov_b32 v3, 1\n global_store_dword v2, v3, {dbg} sc1")
    w0end(a, "el_noinit")
    a(f"""s_cmp_eq_u32 s{S_MODE}, 0
    s_cbranch_scc1 wk_start
    s_barrier
    s_cmp_eq_u32 s{S_XCC}, {X1}
    s_cselect_b32 s{chain.S_SIDE}, 1, 0
    s_mov_b32 s{chain.S_H}, s{S_R}
    s_cmp_eq_u32 s{S_MODE}, 1
    s_cbranch_scc1 ch_go
    s_lshr_b32 s{chain.S_SIDE}, s{S_T}, 5
    s_and_b32 s{chain.S_H}, s{S_T}, 31
    ch_go:""")
    chain.chain_body(a, "ch", bool(OPT["prof"]))
    a.label("wk_start")
    a(f"""s_mov_b32 s{S_Q}, s{S_XCC}
    s_cmp_gt_u32 s{S_XCC}, {X1}
    s_cselect_b32 s{G_T0}, 1, 0
    s_sub_u32 s{S_Q}, s{S_Q}, s{G_T0}
    s_cmp_gt_u32 s{S_XCC}, {X0}
    s_cselect_b32 s{G_T0}, 1, 0
    s_sub_u32 s{S_Q}, s{S_Q}, s{G_T0}
    s_min_u32 s{S_Q}, s{S_Q}, 5""")
    a.label("wk_ln")
    a("s_barrier")
    w0(a, "ln_f"); atomic_ret(a, D_QLN, S_IT); bcast_put(a, [S_IT]); w0end(a, "ln_f")
    bcast_get(a, [S_IT])
    a(f"""s_cmp_ge_u32 s{S_IT}, 128
    s_cbranch_scc1 wk_g1
    s_load_dwordx2 s[4:5], s[0:1], {A_X}
    s_waitcnt lgkmcnt(0)""")
    misc.ln_body(a, 4, S_IT, " sc1")
    w0(a, "ln_i"); poll(a, dbg, f"v_mov_b32 v124, {4*D_INIT}", 1); w0end(a, "ln_i")
    signal(a, F_LN, S_IT, 4)
    a("s_branch wk_ln")
    a.label("wk_g1")
    wstamp(a, 1)
    a(f"s_mov_b32 s{S_N}, 0")
    a.label("wk_g1l")
    a("s_barrier")
    w0(a, "g1_f")
    a.label("g1_again")
    a(f"s_add_u32 s44, s{S_Q}, {D_QKV}")
    atomic_ret(a, ("s", 44), S_IT)
    a(f"""s_cmp_lt_u32 s{S_IT}, 168
    s_cbranch_scc1 g1_have
    s_add_u32 s{S_Q}, s{S_Q}, 1
    s_cmp_eq_u32 s{S_Q}, 6
    s_cselect_b32 s{S_Q}, 0, s{S_Q}
    s_add_u32 s{S_N}, s{S_N}, 1
    s_mov_b32 s{S_CB}, 255
    s_cmp_lt_u32 s{S_N}, 6
    s_cbranch_scc1 g1_again
    s_branch g1_put
    g1_have:
    s_cmp_ge_u32 s{S_IT}, 88
    s_cbranch_scc1 g1_qf
    s_mul_i32 s{S_RB}, s{S_IT}, 187
    s_lshr_b32 s{S_RB}, s{S_RB}, 11
    s_mul_i32 s44, s{S_RB}, 11
    s_sub_u32 s44, s{S_IT}, s44
    s_mul_i32 s44, s44, 6
    s_add_u32 s{S_CB}, s44, s{S_Q}
    s_cmp_ge_u32 s{S_CB}, 64
    s_cbranch_scc1 g1_again
    s_branch g1_dep
    g1_qf:
    s_sub_u32 s{S_IT}, s{S_IT}, 88
    s_mul_i32 s{S_RB}, s{S_IT}, 205
    s_lshr_b32 s{S_RB}, s{S_RB}, 11
    s_mul_i32 s44, s{S_RB}, 10
    s_sub_u32 s44, s{S_IT}, s44
    s_mul_i32 s44, s44, 6
    s_add_u32 s{S_CB}, s44, s{S_Q}
    s_add_u32 s{S_CB}, s{S_CB}, 64
    s_cmp_ge_u32 s{S_CB}, 123
    s_cbranch_scc1 g1_again
    g1_dep:""")
    poll(a, dbg, f"v_mov_b32 v124, {4*D_INIT}", 1)
    poll(a, ws, flag_addr(F_LN, S_RB), 16)
    a.label("g1_put")
    bcast_put(a, [S_RB, S_CB]); w0end(a, "g1_f")
    bcast_get(a, [S_RB, S_CB])
    a(f"""s_cmp_ge_u32 s{S_CB}, 255
    s_cbranch_scc1 wk_f2e
    s_cmp_ge_u32 s{S_CB}, 96
    s_cbranch_scc1 g1_f1
    s_load_dwordx4 s[4:7], s[0:1], {A_WQ}
    s_load_dwordx2 s[8:9], s[0:1], {A_WV}
    s_waitcnt lgkmcnt(0)""")
    task_qkv(a, "g1q", S_RB, S_CB, " sc1")
    a(f"s_lshr_b32 s44, s{S_CB}, 6\n s_lshl_b32 s44, s44, 3\n s_add_u32 s44, s44, s{S_RB}")
    signal(a, F_KV, 44)
    if OPT["wprof"]:
        a(f"s_cmp_lg_u32 s44, 0\n s_cbranch_scc1 ws_nokv")
        wstamp(a, 7)
        a.label("ws_nokv")
    a("s_branch wk_g1l")
    a.label("g1_f1")
    a(f"s_load_dwordx4 s[4:7], s[0:1], {B_WG}\n s_sub_u32 s{S_CB}, s{S_CB}, 96\n s_waitcnt lgkmcnt(0)")
    task_f1(a, "g1f", S_RB, S_CB, " sc1")
    signal(a, F_F1, S_RB)
    a("s_branch wk_g1l")
    a.label("wk_f2e")
    wstamp(a, 2)
    a.label("wk_f2")
    a("s_barrier")
    w0(a, "f2_f"); atomic_ret(a, D_QF2, S_IT)
    a(f"""s_cmp_ge_u32 s{S_IT}, 80
    s_cbranch_scc1 f2_put
    s_mul_i32 s{S_RB}, s{S_IT}, 205
    s_lshr_b32 s{S_RB}, s{S_RB}, 10""")
    poll(a, ws, flag_addr(F_F1, S_RB, 1), 27)
    a.label("f2_put")
    bcast_put(a, [S_IT]); w0end(a, "f2_f")
    bcast_get(a, [S_IT])
    a(f"""s_cmp_ge_u32 s{S_IT}, 80
    s_cbranch_scc1 wk_role
    s_load_dwordx2 s[4:5], s[0:1], {B_WD}
    s_mul_i32 s{S_RB}, s{S_IT}, 205
    s_lshr_b32 s{S_RB}, s{S_RB}, 10
    s_mul_i32 s44, s{S_RB}, 5
    s_sub_u32 s{S_CB}, s{S_IT}, s44
    s_waitcnt lgkmcnt(0)""")
    task_fin(a, "f2t", 4, S_RB, S_CB, False, " sc1")
    signal(a, F_F2, S_RB)
    a("s_branch wk_f2")
    a.label("wk_role")
    wstamp(a, 3)
    a("s_barrier")
    w0(a, "ro_f"); atomic_ret(a, D_ROLE, S_IT); bcast_put(a, [S_IT]); w0end(a, "ro_f")
    bcast_get(a, [S_IT])
    a(f"""s_cmp_ge_u32 s{S_IT}, {OPT['nao']}
    s_cbranch_scc1 wk_red
    s_and_b32 s{S_HG}, s{S_IT}, 15
    s_mov_b32 s{S_N}, 0
    s_mov_b32 s55, 255
    s_mov_b32 s{S_OKRB}, 0""")
    a.label("wk_ao")
    a("s_barrier")
    w0(a, "ao_f")
    a.label("ao_again")
    a(f"s_add_u32 s44, s{S_HG}, {D_AOSEG}")
    atomic_ret(a, ("s", 44), S_SEG)
    a(f"""s_cmp_lt_u32 s{S_SEG}, 64
    s_cbranch_scc1 ao_have
    s_add_u32 s{S_HG}, s{S_HG}, 1
    s_and_b32 s{S_HG}, s{S_HG}, 15
    s_add_u32 s{S_N}, s{S_N}, 1
    s_cmp_lt_u32 s{S_N}, 16
    s_cbranch_scc1 ao_again
    s_branch ao_put
    ao_have:""")
    poll(a, ws, flag_addr(F_KV, S_SEG, 3), 64)
    poll(a, ws, flag_addr(F_Q, S_SEG, 3), 32)
    a.label("ao_put")
    bcast_put(a, [S_SEG, S_HG]); w0end(a, "ao_f")
    bcast_get(a, [S_SEG, S_HG])
    a(f"""s_cmp_ge_u32 s{S_SEG}, 64
    s_cbranch_scc1 wk_red
    s_cmp_eq_u32 s55, s{S_HG}
    s_cbranch_scc1 ao_loaded
    s_load_dwordx2 s[4:5], s[0:1], {A_WO}
    s_mov_b32 s55, s{S_HG}
    s_waitcnt lgkmcnt(0)""")
    ao.ao_weights(a, 4, S_HG, 8)
    wstamp(a, 4)
    a.label("ao_loaded")
    def wait_chain():
        a(f"""s_lshl_b32 s{G_T0}, s{S_HG}, 1
        s_lshr_b32 s{G_T1}, s{G_W}, 1
        s_add_u32 s{G_T0}, s{G_T0}, s{G_T1}
        s_lshl_b32 s{G_T0}, s{G_T0}, 7
        s_add_u32 s{G_T0}, s{G_T0}, {FLG_OFF + F_CH*128}
        v_lshlrev_b32 v124, 8, v0
        v_add_u32 v124, s{G_T0}, v124
        s_mov_b64 exec, 3
        ao_cw:
        global_load_dword v125, v124, {ws} sc1
        s_add_u32 s{S_TRY}, s{S_TRY}, 1
        s_cmp_gt_u32 s{S_TRY}, {MAXW}
        s_cbranch_scc1 wk_fail
        s_waitcnt vmcnt(0)
        v_readlane_b32 s{G_T0}, v125, 0
        v_readlane_b32 s{G_T1}, v125, 1
        s_min_u32 s{G_T0}, s{G_T0}, s{G_T1}
        s_cmp_gt_u32 s{G_T0}, s{S_SEG}
        s_cbranch_scc1 ao_cok
        s_sleep 1
        s_cmp_eq_u32 s{G_T0}, s{S_SEG}
        s_cbranch_scc1 ao_cw
        s_sleep 24
        s_branch ao_cw
        ao_cok:
        s_mov_b64 exec, -1""")
    ao.ao_segment(a, "ao", S_SEG, S_HG, wait_chain)
    signal(a, F_AO, S_SEG)
    a("s_branch wk_ao")
    a.label("wk_red")
    wstamp(a, 5)
    a(f"s_load_dwordx2 s[4:5], s[0:1], {A_X}\n s_load_dwordx2 s[6:7], s[0:1], {A_OUT}\n s_waitcnt lgkmcnt(0)")
    a.label("wk_redl")
    a("s_barrier")
    w0(a, "rd_f"); atomic_ret(a, D_QRED, S_IT)
    a(f"""s_cmp_ge_u32 s{S_IT}, 640
    s_cbranch_scc1 rd_put
    s_mul_i32 s{S_SEG}, s{S_IT}, 6554
    s_lshr_b32 s{S_SEG}, s{S_SEG}, 16""")
    poll(a, ws, flag_addr(F_F2, S_SEG, 2), 5, 8)
    poll(a, ws, flag_addr(F_AO, S_SEG), 16, 2)
    a.label("rd_put")
    bcast_put(a, [S_IT]); w0end(a, "rd_f")
    bcast_get(a, [S_IT])
    a(f"""s_cmp_ge_u32 s{S_IT}, 640
    s_cbranch_scc1 wk_fin
    s_mul_i32 s{S_SEG}, s{S_IT}, 6554
    s_lshr_b32 s{S_SEG}, s{S_SEG}, 16
    s_mul_i32 s44, s{S_SEG}, 10
    s_sub_u32 s44, s{S_IT}, s44""")
    ao.red_item(a, S_SEG, 44, 4, 6)
    a("s_branch wk_redl")
    a.label("wk_fin")
    wstamp(a, 6)
    a("s_endpgm")
    a.label("wk_fail")
    a(f"v_mov_b32 v124, {4*D_FAIL}\n v_mov_b32 v125, 0x7777\n global_store_dword v124, v125, {dbg} sc1")
    a(f"v_mov_b32 v124, {BC}\n v_mov_b32 v125, 0xffff")
    for i in range(3): a(f"ds_write_b32 v124, v125 offset:{4*i}")
    a("s_waitcnt vmcnt(0) lgkmcnt(0)")
    a.label("wk_exit")
    a("s_endpgm")
    return a

a = build()
n = NAME + "_kernel"
hdr = open(f"cdna_kernels/{NAME}.s.ref").read().split("; Override launch geometry")[0]
s = hdr + "; @launch grid=(256,1,1) block=(256,1,1) lds=163840\n" + '.amdgcn_target "amdgcn-amd-amdhsa--gfx950"\n'
s += kernel_header(n) + a.text() + kernel_desc(n, 512, 102, 256)
out = sys.argv[1] if len(sys.argv) > 1 else f"cdna_kernels/{NAME}.s"
open(out, "w").write(s)
print("instr", a.ninsn(), "nops", a.nops, "bytes", len(s))
```
